```python
import torch

def _softmax(x, axis=-1):
    return torch.softmax(x, dim=axis)
def _gelu(x):
    return torch.nn.functional.gelu(x, approximate="tanh")
def _silu(x):
    return torch.nn.functional.silu(x)
def _sigmoid(x):
    return torch.sigmoid(x)
def _layernorm(x, axis=-1, eps=1e-5):
    m = x.mean(dim=axis, keepdim=True)
    v = x.var(dim=axis, keepdim=True, unbiased=False)
    return (x - m) / torch.sqrt(v + eps)
def _scatter_add(tgt, idx, src, axis=0):
    return tgt.clone().index_add_(axis, idx, src)
def _segment_sum(src, seg, n):
    out = torch.zeros((n,) + src.shape[1:], dtype=src.dtype)
    return out.index_add_(0, seg, src)
def _pad(x, pw):
    flat = tuple(v for pair in reversed(pw) for v in pair)
    return torch.nn.functional.pad(x, flat)

kernel_name = 'concat_heads__mha_block_cached__mha_block_cached__near_ridge'

def setup_inputs():

    _w = (lambda a: (lambda t: t.to(torch.bfloat16) if t.is_floating_point() else t)(torch.as_tensor(a)))
    def _A_setup():
        B, Sq, D = 8, 128, 448
        H, Sk, Dh = 16, 512, 256
        return {
            "x": _w((lambda *s: torch.randn(*s, dtype=torch.bfloat16) * 0.8)(B, Sq, D)),
            "k_cache": _w((lambda *s: torch.randn(*s, dtype=torch.bfloat16) * 0.8)(B, H, Sk, Dh)),
            "v_cache": _w((lambda *s: torch.randn(*s, dtype=torch.bfloat16) * 0.05)(B, H, Sk, Dh)),
            "wq": _w((lambda *s: torch.randn(*s, dtype=torch.bfloat16) * 0.8)(D, H * Dh) * (D ** -0.5)),
            "wo": _w((lambda *s: torch.randn(*s, dtype=torch.bfloat16) * 0.05)(H * Dh, D) * ((H * Dh) ** -0.5)),
        }
    _A_in = _A_setup()

    def _B_setup():
        B, Sq, D = 8, 128, 448
        H, Sk, Dh = 16, 512, 256
        return {
            "x": _w((lambda *s: torch.randn(*s, dtype=torch.bfloat16) * 0.8)(B, Sq, D)),
            "k_cache": _w((lambda *s: torch.randn(*s, dtype=torch.bfloat16) * 0.8)(B, H, Sk, Dh)),
            "v_cache": _w((lambda *s: torch.randn(*s, dtype=torch.bfloat16) * 0.05)(B, H, Sk, Dh)),
            "wq": _w((lambda *s: torch.randn(*s, dtype=torch.bfloat16) * 0.8)(D, H * Dh) * (D ** -0.5)),
            "wo": _w((lambda *s: torch.randn(*s, dtype=torch.bfloat16) * 0.05)(H * Dh, D) * ((H * Dh) ** -0.5)),
        }
    _B_in = _B_setup()

    return {
        "A_x": _A_in["x"],
        "A_k_cache": _A_in["k_cache"],
        "A_v_cache": _A_in["v_cache"],
        "A_wq": _A_in["wq"],
        "A_wo": _A_in["wo"],
        "B_x": _B_in["x"],
        "B_k_cache": _B_in["k_cache"],
        "B_v_cache": _B_in["v_cache"],
        "B_wq": _B_in["wq"],
        "B_wo": _B_in["wo"],
    }

def reference(A_x, A_k_cache, A_v_cache, A_wq, A_wo, B_x, B_k_cache, B_v_cache, B_wq, B_wo):
    def _A_ref(x, k_cache, v_cache, wq, wo):
        B, Sq, D = x.shape
        H, Dh = 16, 256
        q = (lambda x, *d: x.permute(*d))((x @ wq).reshape(B, Sq, H, Dh), 0, 2, 1, 3)
        scores = torch.einsum("bhqd,bhkd->bhqk", q, k_cache) * (Dh ** -0.5)
        p = _softmax(scores, axis=-1)
        o = torch.einsum("bhqk,bhkd->bhqd", p, v_cache)
        return (lambda x, *d: x.permute(*d))(o, 0, 2, 1, 3).reshape(B, Sq, H * Dh) @ wo

    def _B_ref(x, k_cache, v_cache, wq, wo):
        B, Sq, D = x.shape
        H, Dh = 16, 256
        q = (lambda x, *d: x.permute(*d))((x @ wq).reshape(B, Sq, H, Dh), 0, 2, 1, 3)
        scores = torch.einsum("bhqd,bhkd->bhqk", q, k_cache) * (Dh ** -0.5)
        p = _softmax(scores, axis=-1)
        o = torch.einsum("bhqk,bhkd->bhqd", p, v_cache)
        return (lambda x, *d: x.permute(*d))(o, 0, 2, 1, 3).reshape(B, Sq, H * Dh) @ wo

    a = _A_ref(A_x, A_k_cache, A_v_cache, A_wq, A_wo)
    b = _B_ref(B_x, B_k_cache, B_v_cache, B_wq, B_wo)
    return torch.concatenate([a, b], axis=-1)
```

```python
import re

def regs(spec):
    spec = spec.strip()
    if spec.startswith('-'): spec = spec[1:]
    m = re.fullmatch(r'([vas])\[(\d+):(\d+)\]', spec)
    if m: return [f"{m.group(1)}{i}" for i in range(int(m.group(2)), int(m.group(3)) + 1)]
    m = re.fullmatch(r'([vas])(\d+)', spec)
    if m: return [spec]
    if spec in ('vcc', 'exec', 'm0', 'scc'): return [spec]
    return []

def R(f, lo, n=1):
    return f"{f}{lo}" if n == 1 else f"{f}[{lo}:{lo+n-1}]"

TRANS = ('v_exp_f32', 'v_log_f32', 'v_rcp_f32', 'v_rsq_f32', 'v_sqrt_f32', 'v_sin_f32', 'v_cos_f32')

class Ins:
    __slots__ = ('text', 'kind', 'rd', 'wr', 'op', 'srcc', 'ws')
    def __init__(self, text, kind, rd, wr, op, srcc=(), ws=1):
        self.text, self.kind, self.rd, self.wr, self.op, self.srcc, self.ws = text, kind, set(rd), set(wr), op, set(srcc), ws

def parse(text):
    t = text.split(';')[0].strip()
    if not t or t.endswith(':') or t.startswith('.'):
        return Ins(text, 'label', [], [], t, ws=0)
    parts = t.split(None, 1)
    op = parts[0]
    ops = [o.strip() for o in parts[1].split(',')] if len(parts) > 1 else []
    if ops:
        ops[-1] = ops[-1].split()[0] if ops[-1].split() else ops[-1]
    if op == 's_nop':
        return Ins(text, 'nop', [], [], op, ws=int(ops[0], 0) + 1)
    if op.startswith('v_mfma'):
        return Ins(text, 'mfma', regs(ops[1]) + regs(ops[2]) + regs(ops[3]), regs(ops[0]), op, srcc=regs(ops[3]))
    if op.startswith('v_permlane'):
        r = regs(ops[0]) + regs(ops[1])
        return Ins(text, 'valu', r, r, op)
    if op.startswith('v_cmp'):
        rd = []
        for o in ops[1:]: rd += regs(o)
        return Ins(text, 'valu', rd, regs(ops[0]), op)
    if op.startswith('v_'):
        rd = []
        for o in ops[1:]: rd += regs(o)
        wr = regs(ops[0])
        if op.startswith(('v_fmac', 'v_pk_fmac')): rd += wr
        return Ins(text, 'trans' if op.split('_e')[0] in TRANS else 'valu', rd, wr, op)
    if op.startswith('ds_read'):
        return Ins(text, 'ds', regs(ops[1]), regs(ops[0]), op)
    if op.startswith('ds_write'):
        rd = []
        for o in ops: rd += regs(o)
        return Ins(text, 'ds', rd, [], op)
    if op.startswith('buffer_load') or op.startswith('global_load'):
        if ' lds' in t:
            rd = ['m0']
            for o in ops: rd += regs(o)
            return Ins(text, 'dma', rd, [], op)
        rd = []
        for o in ops[1:]: rd += regs(o)
        return Ins(text, 'vmem', rd, regs(ops[0]), op)
    if op.startswith('buffer_store') or op.startswith('global_store') or op.startswith('buffer_atomic') or op.startswith('global_atomic'):
        rd = []
        for o in ops: rd += regs(o)
        i = Ins(text, 'store', rd, [], op)
        i.srcc = set(regs(ops[0] if op.startswith('buffer') else ops[1]))
        return i
    if op.startswith('s_'):
        if op in ('s_waitcnt', 's_barrier', 's_endpgm', 's_setprio', 's_sleep') or op.startswith(('s_branch', 's_cbranch')):
            return Ins(text, 'ctl', [], [], op)
        rd = []
        for o in ops[1:]: rd += regs(o)
        wr = regs(ops[0]) if not op.startswith('s_cmp') else []
        if op.startswith('s_cmp'): rd += regs(ops[0])
        return Ins(text, 'salu', rd, wr, op)
    return Ins(text, 'other', [], [], op)

def mfma_passes(op):
    return 8 if '32x32' in op else 4

def need(prod, cons):
    n = 0
    pk, ck = prod.kind, cons.kind
    valu_p = pk in ('valu', 'trans')
    valu_c = ck in ('valu', 'trans')
    if valu_p:
        vw = {r for r in prod.wr if r[0] in 'va' and r not in ('vcc',)}
        sw = {r for r in prod.wr if r[0] == 's' or r == 'vcc'}
        if ck == 'mfma' and vw & cons.rd: n = max(n, 2)
        if pk == 'trans' and ck == 'valu' and vw & cons.rd: n = max(n, 1)
        if pk == 'trans' and ck == 'trans' and vw & cons.rd: n = max(n, 1)
        if cons.op.startswith('v_permlane') and vw & cons.rd: n = max(n, 2)
        if cons.op.startswith(('v_readfirstlane', 'v_readlane')) and vw & cons.rd: n = max(n, 1)
        if ck in ('vmem', 'dma', 'store') and sw & cons.rd: n = max(n, 5)
        if valu_c and sw & cons.rd: n = max(n, 2)
        if ck == 'salu' and sw & cons.rd: n = max(n, 2)
        if 'exec' in prod.wr and ck == 'mfma': n = max(n, 4)
    if pk == 'salu':
        if 'm0' in prod.wr and ck == 'dma': n = max(n, 1)
    if pk == 'mfma':
        p = mfma_passes(prod.op)
        d = prod.wr
        if ck == 'mfma':
            ab = cons.rd - cons.srcc
            if d & ab: n = max(n, {4: 8, 8: 12}[p])
            if d & cons.srcc and d != cons.srcc: n = max(n, {4: 6, 8: 10}[p])
            if d & cons.wr and not (cons.srcc == d and cons.wr == d):
                n = max(n, {4: 6, 8: 10}[p])
        elif ck in ('valu', 'trans', 'vmem', 'ds', 'store', 'dma'):
            if d & (cons.rd | cons.wr): n = max(n, {4: 8, 8: 12}[p])
            if valu_c and prod.srcc & cons.wr: n = max(n, {4: 3, 8: 7}[p])
    if pk == 'store' and ('x4' in prod.op or 'x3' in prod.op):
        if prod.srcc & cons.wr: n = max(n, 2)
    return n

class Prog:
    def __init__(self):
        self.ins = []
        self.nops = 0
    def __call__(self, text):
        for line in text.split('\n'):
            if line.strip(): self.emit(line.strip())
    def emit(self, text):
        c = parse(text)
        if c.kind not in ('label', 'nop', 'ctl'):
            dist = 0; short = 0
            for p in reversed(self.ins):
                if dist >= 20: break
                if p.kind == 'label' and p.op.endswith(':'):
                    continue
                nd = need(p, c)
                if nd > dist: short = max(short, nd - dist)
                dist += p.ws
            while short > 0:
                k = min(short, 16)
                self.ins.append(parse(f"s_nop {k-1}"))
                self.nops += k
                short -= k
        self.ins.append(c)
    def text(self):
        out = []
        for i in self.ins:
            out.append(i.text if i.kind == 'label' else "    " + i.text)
        return "\n".join(out) + "\n"
```

```python
import sys, struct
sys.path.insert(0, 'gen')
from asmdsl import Prog, R

KNAME = "concat_heads__mha_block_cached__mha_block_cached__near_ridge_kernel"
HEADER = open('concat_heads__mha_block_cached__mha_block_cached__near_ridge.s.ref').read().split('; Override')[0]

def f32hex(x): return hex(struct.unpack('<I', struct.pack('<f', x))[0])

def kd(name, vgpr, sgpr, acc):
    return f""".section .rodata,"a"
.p2align 6
.amdhsa_kernel {name}
  .amdhsa_next_free_vgpr {vgpr}
  .amdhsa_next_free_sgpr {sgpr}
  .amdhsa_accum_offset {acc}
  .amdhsa_group_segment_fixed_size 0
  .amdhsa_kernarg_size 104
  .amdhsa_user_sgpr_count 2
  .amdhsa_user_sgpr_kernarg_segment_ptr 1
  .amdhsa_system_sgpr_workgroup_id_x 1
.end_amdhsa_kernel
"""

class Cfg:
    nslots = 10
    pd = 5
    kv_flag = "nt"
    w_flag = "nt"
    x_flag = "nt"
    st_flag = ""
    ld_flag = ""
    stamps = False
    mapping = "W"
    def __init__(self, **kw):
        for k, v in kw.items(): setattr(self, k, v)

S_K, S_V, S_WQ, S_WO, S_X, S_WS = 8, 12, 16, 20, 24, 28
S_P, S_B, S_H, S_W = 32, 33, 34, 35
S_LW4K, S_LW2K = 36, 37
S_OFF = 38
S_C = 39
S_T = 40
S_ST = 48
V_X = 0
V_QF = 112
V_QA = 128
V_A = 160
V_OWQ = 192
V_OWQH = 196
V_OK = 198
V_OV = 202
V_OWO = 206
V_AK = 210
V_AT = 214
V_M = 216
V_L = 217
V_MC = 221
V_SO = 222
V_TMP = 223
V_T2 = 224

def gen_main(cfg):
    P = Prog()
    nst = [0]
    def stamp():
        if cfg.stamps:
            P(f"s_memrealtime s[{S_ST+2*nst[0]}:{S_ST+2*nst[0]+1}]")
            nst[0] += 1
    P(f"{KNAME}:")
    stamp()
    P("s_cmp_ge_u32 s2, 256")
    P("s_cbranch_scc1 L_end")
    P("s_and_b32 s3, s2, 7")
    P("s_lshr_b32 s4, s2, 3")
    if cfg.mapping == "W":
        P("s_and_b32 s5, s4, 3")
        P("s_lshl_b32 s6, s3, 2")
        P("s_add_u32 s5, s5, s6")
        P(f"s_lshr_b32 s{S_P}, s5, 4")
        P(f"s_and_b32 s{S_H}, s5, 15")
        P(f"s_lshr_b32 s{S_B}, s4, 2")
    else:
        P(f"s_lshr_b32 s{S_P}, s3, 2")
        P("s_and_b32 s5, s3, 3")
        P("s_lshl_b32 s5, s5, 1")
        P("s_and_b32 s6, s4, 1")
        P(f"s_add_u32 s{S_B}, s5, s6")
        P(f"s_lshr_b32 s{S_H}, s4, 1")
    P(f"s_mul_i32 s5, s{S_P}, 40")
    P("s_add_u32 s6, s0, s5")
    P("s_addc_u32 s7, s1, 0")
    P("s_load_dwordx4 s[80:83], s[6:7], 0")
    P("s_load_dwordx4 s[84:87], s[6:7], 16")
    P("s_load_dwordx2 s[88:89], s[6:7], 32")
    P("s_load_dwordx2 s[90:91], s[0:1], 96")
    t = V_T2
    L, RR, PC, SWT, W_, T0, T1, T2 = t, t+1, t+2, t+3, t+4, t+5, t+6, t+7
    P(f"v_lshrrev_b32 v{W_}, 6, v0")
    P(f"v_and_b32 v{L}, 63, v0")
    P(f"v_readfirstlane_b32 s{S_W}, v{W_}")
    P(f"v_lshrrev_b32 v{RR}, 3, v{L}")
    P(f"v_and_b32 v{PC}, 7, v{L}")
    P(f"v_and_b32 v{T0}, 2, v{RR}")
    P(f"v_lshlrev_b32 v{T0}, 1, v{T0}")
    P(f"v_xor_b32 v{SWT}, v{PC}, v{T0}")
    P(f"v_lshlrev_b32 v{SWT}, 4, v{SWT}")
    P(f"s_lshl_b32 s{S_LW4K}, s{S_W}, 12")
    P(f"s_lshl_b32 s{S_LW2K}, s{S_W}, 11")
    P(f"v_lshl_add_u32 v{T0}, v{W_}, 5, v{RR}")
    P(f"v_lshl_add_u32 v{T1}, v{T0}, 13, v{SWT}")
    for i in range(4): P(f"v_add_u32 v{V_OWQ+i}, {i*8*8192 - 1024*i}, v{T1}")
    P(f"v_lshrrev_b32 v{T1}, 1, v{RR}")
    P(f"v_xor_b32 v{T1}, v{PC}, v{T1}")
    P(f"v_lshlrev_b32 v{T1}, 4, v{T1}")
    P(f"v_lshl_add_u32 v{T1}, v{T0}, 9, v{T1}")
    P(f"v_xor_b32 v{T2}, 64, v{T1}")
    for i in range(4): P(f"v_add_u32 v{V_OK+i}, {i*8*512 - 1024*i}, v{T1 if i % 2 == 0 else T2}")
    P(f"v_and_b32 v{T1}, 31, v{L}")
    P(f"v_lshl_add_u32 v{T1}, v{W_}, 5, v{T1}")
    P(f"v_mul_u32_u24 v{T1}, 896, v{T1}")
    P(f"v_lshrrev_b32 v{T2}, 5, v{L}")
    P(f"v_lshl_add_u32 v{V_TMP}, v{T2}, 4, v{T1}")
    P(f"v_lshl_add_u32 v{T1}, v{W_}, 4, v{RR}")
    P(f"v_lshl_add_u32 v{T1}, v{T1}, 13, v{SWT}")
    for i in range(2): P(f"v_add_u32 v{V_OWQH+i}, {i*8*8192 - 1024*i}, v{T1}")
    P("s_waitcnt lgkmcnt(0)")
    P(f"s_mul_i32 s5, s{S_B}, 114688")
    P(f"s_add_u32 s{S_X}, s80, s5\ns_addc_u32 s{S_X+1}, s81, 0\ns_mov_b32 s{S_X+2}, 114688\ns_mov_b32 s{S_X+3}, 0x20000")
    P(f"s_lshl_b32 s5, s{S_H}, 9")
    P(f"s_add_u32 s{S_WQ}, s86, s5\ns_addc_u32 s{S_WQ+1}, s87, 0\ns_sub_u32 s{S_WQ+2}, 3670016, s5\ns_mov_b32 s{S_WQ+3}, 0x20000")
    P(f"s_lshl_b32 s5, s{S_B}, 4\ns_add_u32 s5, s5, s{S_H}\ns_lshl_b32 s6, s5, 18")
    P(f"s_add_u32 s{S_K}, s82, s6\ns_addc_u32 s{S_K+1}, s83, 0\ns_mov_b32 s{S_K+2}, 262144\ns_mov_b32 s{S_K+3}, 0x20000")
    P(f"s_add_u32 s{S_V}, s84, s6\ns_addc_u32 s{S_V+1}, s85, 0\ns_mov_b32 s{S_V+2}, 262144\ns_mov_b32 s{S_V+3}, 0x20000")
    P(f"s_mul_i32 s6, s{S_H}, 229376")
    P(f"s_add_u32 s{S_WO}, s88, s6\ns_addc_u32 s{S_WO+1}, s89, 0\ns_mov_b32 s{S_WO+2}, 229376\ns_mov_b32 s{S_WO+3}, 0x20000")
    P(f"s_lshl_b32 s6, s{S_P}, 7\ns_add_u32 s5, s5, s6\ns_mul_i32 s5, s5, 114688")
    P(f"s_add_u32 s{S_WS}, s90, s5\ns_addc_u32 s{S_WS+1}, s91, 0\ns_mov_b32 s{S_WS+2}, 114688\ns_mov_b32 s{S_WS+3}, 0x20000")

    vm = []
    def fl(f): return (" " + f) if f else ""
    for s in range(28):
        P(f"buffer_load_dwordx4 v[{V_X+4*s}:{V_X+4*s+3}], v{V_TMP}, s[{S_X}:{S_X+3}], 0 offen offset:{32*s}{fl(cfg.x_flag)}")
        vm.append(('x', s))

    stages = []
    for c in range(4):
        for s in range(3): stages.append(('wq', S_WQ, V_OWQ, 4, 128*s*8192 + c*128, S_LW4K, cfg.w_flag))
        stages.append(('wqh', S_WQ, V_OWQH, 2, 384*8192 + c*128, S_LW2K, cfg.w_flag))
        for s in range(4): stages.append(('k', S_K, V_OK, 4, 128*s*512 + c*128, S_LW4K, cfg.kv_flag))
    for s in range(16): stages.append(('v', S_V, V_OV, 4, 32*s*512, S_LW4K, cfg.kv_flag))
    for j in range(7):
        for s in range(2): stages.append(('wo', S_WO, V_OWO, 4, 128*s*896 + j*128, S_LW4K, cfg.w_flag))
    NS = len(stages)
    def dma_groups(s):
        kind, srd, vo, n, so, m0s, f = stages[s]
        g = []
        for i in range(n):
            ins = []
            if i == 0:
                ins.append(f"s_add_u32 m0, s{m0s}, {(s % cfg.nslots)*16384}")
                ins.append(f"s_mov_b32 s{S_OFF}, {so}")
            ins.append(f"buffer_load_dwordx4 v{vo+i}, s[{srd}:{srd+3}], s{S_OFF} offen offset:{1024*i}{fl(f)} lds")
            g.append((ins, ('st', s)))
        return g
    def emit_group(g):
        for x in g[0]: P(x)
        vm.append(g[1])
    npro = cfg.nslots - 2
    for s in range(npro):
        for g in dma_groups(s): emit_group(g)
    stamp()
    P(f"v_lshlrev_b32 v{T1}, 9, v{RR}")
    P(f"v_lshl_add_u32 v{T1}, v{W_}, 7, v{T1}")
    P(f"v_add_u32 v{T1}, v{T1}, v{SWT}")
    for i in range(4): P(f"v_add_u32 v{V_OV+i}, {i*8*512 - 1024*i}, v{T1}")
    P(f"v_mul_u32_u24 v{T1}, 896, v{T0}")
    P(f"v_add_u32 v{T1}, v{T1}, v{SWT}")
    for i in range(4): P(f"v_add_u32 v{V_OWO+i}, {i*8*896 - 1024*i}, v{T1}")
    P(f"v_and_b32 v{T0}, 0x13, v{L}")
    P(f"v_and_b32 v{T1}, 4, v{L}")
    P(f"v_lshl_add_u32 v{T0}, v{T1}, 1, v{T0}")
    P(f"v_and_b32 v{T1}, 8, v{L}")
    P(f"v_lshrrev_b32 v{T1}, 1, v{T1}")
    P(f"v_add_u32 v{T0}, v{T0}, v{T1}")
    P(f"v_bfe_u32 v{T1}, v{T0}, 1, 3")
    P(f"v_lshrrev_b32 v{T2}, 5, v{L}")
    P(f"v_xor_b32 v{T1}, v{T1}, v{T2}")
    P(f"v_lshlrev_b32 v{T1}, 4, v{T1}")
    P(f"v_lshl_add_u32 v{V_AK}, v{T0}, 7, v{T1}")
    for j in range(1, 4): P(f"v_xor_b32 v{V_AK+j}, {32*j}, v{V_AK}")
    P(f"v_bfe_u32 v{T0}, v{L}, 2, 2")
    P(f"v_lshl_add_u32 v{T1}, v{T2}, 3, v{T0}")
    P(f"v_lshlrev_b32 v{T1}, 7, v{T1}")
    P(f"v_lshrrev_b32 v{T0}, 1, v{T0}")
    P(f"v_lshl_add_u32 v{T1}, v{T0}, 6, v{T1}")
    P(f"v_bfe_u32 v{T0}, v{L}, 4, 1")
    P(f"v_lshl_add_u32 v{T1}, v{T0}, 5, v{T1}")
    P(f"v_and_b32 v{T0}, 1, v{L}")
    P(f"v_lshl_add_u32 v{T1}, v{T0}, 4, v{T1}")
    P(f"v_bfe_u32 v{T0}, v{L}, 1, 1")
    P(f"v_lshl_add_u32 v{V_AT}, v{T0}, 3, v{T1}")
    P(f"v_xor_b32 v{V_AT+1}, 64, v{V_AT}")
    P(f"v_mul_u32_u24 v{T0}, 28672, v{W_}")
    P(f"v_lshl_add_u32 v{V_SO}, v{L}, 4, v{T0}")
    P(f"s_mov_b32 s{S_C}, {f32hex(1.4426950408889634/16.0)}")
    P(f"v_mov_b32 v{V_M}, 0xff800000")
    for i in range(4): P(f"v_mov_b32 v{V_L+i}, 0")

    items = []
    def item(stage, reads, B, D, first, pre=None):
        items.append(dict(stage=stage, reads=reads, B=B, D=D, first=first, pre=pre or [], fill=[]))
        return items[-1]
    def trreads(m, rel):
        return [('T', m, rel), ('T', m, rel + 512)]
    def spread(lst, start, n):
        k = len(lst)
        for j in range(n):
            items[start + j]['fill'] += lst[j*k//n:(j+1)*k//n]
    st = 0
    for c in range(4):
        for ks in range(28):
            s = st + ks // 8
            for m in range(2):
                item(s, trreads(m, (ks % 8)*2048), R('v', V_X+4*ks, 4), R('v', V_QA+16*m, 16), ks == 0)
        st += 4
        cv = [f"v_cvt_pk_bf16_f32 v{V_QF+j}, v{V_QA+2*j}, v{V_QA+2*j+1}" for j in range(16)]
        base = len(items)
        for tl in range(16):
            for j in range(4):
                item(st + tl // 4, [('K', j, (tl % 4)*4096)], R('v', V_QF+4*j, 4), R('a', 16*tl, 16), c == 0 and j == 0)
        items[base]['pre'] = cv[0:4]
        items[base]['fill'] += cv[4:8]
        items[base+1]['fill'] += cv[8:12]
        items[base+2]['fill'] += cv[12:16]
        if c == 3:
            def maxcode(tl):
                o = []
                tb = V_T2 + 16*(tl % 2)
                for i in range(16): o.append(f"v_accvgpr_read_b32 v{tb+i}, a{16*tl+i}")
                for i in range(8): o.append(f"v_max3_f32 v{V_M}, v{tb+2*i}, v{tb+2*i+1}, v{V_M}")
                return o
            for tl in range(15):
                spread(maxcode(tl), base + 4*(tl+1) + 1, 3) if tl < 15 else None
            lastmax = maxcode(15)
        st += 4
    def softmax(tl):
        o = []
        pb = V_QA + 8*(tl % 2); tb = V_QA + 16
        for i in range(16):
            o.append(f"v_accvgpr_read_b32 v{tb+i}, a{16*tl+i}")
        for i in range(16):
            o.append(f"v_fma_f32 v{tb+i}, v{tb+i}, s{S_C}, -v{V_MC}")
        for i in range(16):
            o.append(f"v_exp_f32 v{tb+i}, v{tb+i}")
        for i in range(16):
            o.append(f"v_add_f32 v{V_L+i%4}, v{V_L+i%4}, v{tb+i}")
            if i % 2 == 1: o.append(f"v_cvt_pk_bf16_f32 v{pb+i//2}, v{tb+i-1}, v{tb+i}")
        return o
    pre = lastmax + [f"v_mov_b32 v{V_TMP}, v{V_M}", f"v_permlane32_swap_b32 v{V_TMP}, v{V_M}",
                     f"v_max_f32 v{V_M}, v{V_M}, v{V_TMP}", f"v_mul_f32 v{V_MC}, s{S_C}, v{V_M}"] + softmax(0)
    for tl in range(16):
        base = len(items)
        for s2 in range(2):
            for m in range(8):
                item(st + tl, trreads(m % 2, (m//2)*4096 + s2*2048), R('v', V_QA + 8*(tl % 2) + 4*s2, 4), R('v', V_X+16*m, 16), tl == 0 and s2 == 0)
        if tl == 0: items[base]['pre'] = pre
        if tl < 15: spread(softmax(tl+1), base, 16)
        else:
            fin = [f"v_add_f32 v{V_L}, v{V_L}, v{V_L+1}", f"v_add_f32 v{V_L+2}, v{V_L+2}, v{V_L+3}",
                   f"v_add_f32 v{V_L}, v{V_L}, v{V_L+2}", f"v_mov_b32 v{V_TMP}, v{V_L}",
                   f"v_permlane32_swap_b32 v{V_TMP}, v{V_L}", f"v_add_f32 v{V_L}, v{V_L}, v{V_TMP}",
                   f"v_rcp_f32 v{V_L+1}, v{V_L}"]
            spread(fin, base, 7)
    st += 16
    def norm(m):
        o = []
        b = V_X + 16*m
        for i in range(8):
            o.append(f"v_mul_f32 v{b+2*i}, v{b+2*i}, v{V_L+1}")
            o.append(f"v_mul_f32 v{b+2*i+1}, v{b+2*i+1}, v{V_L+1}")
            o.append(f"v_cvt_pk_bf16_f32 v{b+i}, v{b+2*i}, v{b+2*i+1}")
        return o
    def outstore(j):
        o = []
        ab = V_QA if j % 2 == 0 else V_T2
        o.append(f"s_mov_b32 s{S_T}, {j*4096}")
        for m in range(2):
            b = ab + 16*m
            for hf in range(2):
                for i in range(4*hf, 4*hf+4):
                    o.append(f"v_cvt_pk_bf16_f32 v{b+i}, v{b+2*i}, v{b+2*i+1}")
                o.append(('vm', f"buffer_store_dwordx4 v[{b+4*hf}:{b+4*hf+3}], v{V_SO}, s[{S_WS}:{S_WS+3}], s{S_T} offen offset:{(2*m+hf)*1024}{fl(cfg.st_flag)}"))
        return o
    for j in range(7):
        base = len(items)
        ab = V_QA if j % 2 == 0 else V_T2
        for ks in range(16):
            for m in range(2):
                item(st + 2*j + ks // 8, trreads(m, (ks % 8)*2048), R('v', V_X + 16*(ks//2) + 4*(ks % 2), 4), R('v', ab+16*m, 16), ks == 0)
        if j == 0:
            items[base]['pre'] = norm(0)
            for m in range(1, 8): spread(norm(m), base + 4*(m-1), 4)
        else:
            spread(outstore(j-1), base + 3, 12)
    tail = outstore(6)

    N = len(items)
    curbase = {'K': 0, 'T': 0}
    lds = []
    pend = []
    published = -1
    first_of = {}
    for i, it in enumerate(items): first_of.setdefault(it['stage'], i)
    def emitx(x):
        if isinstance(x, tuple):
            P(x[1]); vm.append(('o', 0))
        else: P(x)
    def issue_reads(i):
        nonlocal published, pend
        it = items[i]
        s = it['stage']
        if s > published:
            assert s == published + 1
            for g in pend: emit_group(g)
            pend = []
            idx = max(k for k, tg in enumerate(vm) if tg == ('st', s))
            P(f"s_waitcnt vmcnt({min(63, len(vm)-1-idx)})")
            P("s_barrier")
            if cfg.stamps and s in cfg.stamp_stages: stamp()
            published = s
            ns = s - 2 + cfg.nslots
            if npro <= ns < NS: pend = dma_groups(ns)
        sb = (s % cfg.nslots) * 16384
        ab = V_A + 4*(i % 8)
        for k, (kind, idx, rel) in enumerate(it['reads']):
            off = sb + rel - curbase[kind]
            if off < 0 or off > 65535:
                d = sb - curbase[kind]
                rb, n = (V_AK, 4) if kind == 'K' else (V_AT, 2)
                for q in range(n): P(f"v_add_u32 v{rb+q}, {d & 0xffffffff}, v{rb+q}")
                curbase[kind] = sb
                off = rel
            if kind == 'K': P(f"ds_read_b128 v[{ab}:{ab+3}], v{V_AK+idx} offset:{off}")
            else: P(f"ds_read_b64_tr_b16 v[{ab+2*k}:{ab+2*k+1}], v{V_AT+idx} offset:{off}")
            lds.append(i)
    for i in range(min(cfg.pd, N)): issue_reads(i)
    since = 0
    for i, it in enumerate(items):
        if i + cfg.pd < N: issue_reads(i + cfg.pd)
        for x in it['pre']: emitx(x)
        last = max(k for k, tg in enumerate(lds) if tg == i)
        P(f"s_waitcnt lgkmcnt({len(lds)-1-last})")
        ab = V_A + 4*(i % 8)
        P(f"v_mfma_f32_32x32x16_bf16 {it['D']}, v[{ab}:{ab+3}], {it['B']}, {'0' if it['first'] else it['D']}")
        for x in it['fill']: emitx(x)
        if pend:
            nxt = first_of.get(published + 1, N + cfg.pd) - cfg.pd
            rem = nxt - i
            if rem <= len(pend) * 3 or True:
                spacing = max(1, (rem) // len(pend))
                since += 1
                if since >= min(spacing, 3):
                    emit_group(pend.pop(0)); since = 0
    for x in tail: emitx(x)
    stamp()
    P("s_waitcnt vmcnt(0)")
    stamp()
    if cfg.stamps:
        P("s_waitcnt lgkmcnt(0)")
        P(f"s_add_u32 s{S_T}, s90, 0x4000000\ns_addc_u32 s{S_T+1}, s91, 0\ns_mov_b32 s{S_T+2}, 0x100000\ns_mov_b32 s{S_T+3}, 0x20000")
        P(f"s_lshl_b32 s5, s2, 10\ns_lshl_b32 s6, s{S_W}, 8\ns_add_u32 s5, s5, s6")
        P("v_mov_b32 v1, s5")
        for k in range(nst[0]):
            P(f"v_mov_b32 v2, s{S_ST+2*k}\nv_mov_b32 v3, s{S_ST+2*k+1}")
            P(f"buffer_store_dwordx2 v[2:3], v1, s[{S_T}:{S_T+3}], 0 offen offset:{8*k}")
            P("s_nop 2")
        P("s_waitcnt vmcnt(0)")
    P("L_end:")
    P("s_endpgm")
    return P, nst[0]

def gen_reduce(cfg):
    P = Prog()
    def fl(f): return (" " + f) if f else ""
    P("red_kernel:")
    P("s_cmp_ge_u32 s2, 256")
    P("s_cbranch_scc1 L_rend")
    P("s_load_dwordx2 s[4:5], s[0:1], 80")
    P("s_load_dwordx2 s[6:7], s[0:1], 96")
    P("s_lshr_b32 s16, s2, 4")
    P("s_and_b32 s17, s2, 15")
    P("v_lshrrev_b32 v1, 3, v0")
    P("v_and_b32 v2, 7, v0")
    P("s_lshl_b32 s18, s17, 3")
    P("v_add_u32 v2, s18, v2")
    P("v_lshrrev_b32 v3, 5, v2")
    P("v_mul_u32_u24 v3, 28672, v3")
    P("v_lshrrev_b32 v4, 1, v1")
    P("v_lshl_add_u32 v3, v4, 10, v3")
    P("v_and_b32 v4, 1, v1")
    P("v_lshlrev_b32 v4, 5, v4")
    P("v_and_b32 v5, 31, v2")
    P("v_add_u32 v4, v4, v5")
    P("v_lshl_add_u32 v3, v4, 4, v3")
    P("s_and_b32 s19, s16, 7")
    P("s_lshl_b32 s19, s19, 7")
    P("v_add_u32 v5, s19, v2")
    P("v_mul_u32_u24 v5, 1792, v5")
    P("v_lshl_add_u32 v5, v1, 4, v5")
    P("s_lshr_b32 s19, s16, 3")
    P("s_mul_i32 s19, s19, 896")
    P("v_add_u32 v5, s19, v5")
    P("s_mul_i32 s20, s16, 1835008")
    P("s_waitcnt lgkmcnt(0)")
    P("s_add_u32 s8, s6, s20\ns_addc_u32 s9, s7, 0\ns_mov_b32 s10, 1835008\ns_mov_b32 s11, 0x20000")
    P("s_mov_b32 s12, s4\ns_mov_b32 s13, s5\ns_mov_b32 s14, 1835008\ns_mov_b32 s15, 0x20000")
    for h in range(16):
        P(f"s_mov_b32 s{24+h}, {h*114688}")
        P(f"buffer_load_dwordx4 v[{16+4*h}:{19+4*h}], v3, s[8:11], s{24+h} offen{fl(cfg.ld_flag)}")
    P("s_mov_b32 s21, 0xffff0000")
    for h in range(16):
        P(f"s_waitcnt vmcnt({15-h})")
        for i in range(4):
            r = 16 + 4*h + i
            if h == 0:
                P(f"v_lshlrev_b32 v{8+2*i}, 16, v{r}")
                P(f"v_and_b32 v{9+2*i}, s21, v{r}")
            else:
                P(f"v_lshlrev_b32 v6, 16, v{r}")
                P(f"v_and_b32 v7, s21, v{r}")
                P(f"v_add_f32 v{8+2*i}, v{8+2*i}, v6")
                P(f"v_add_f32 v{9+2*i}, v{9+2*i}, v7")
    for i in range(4): P(f"v_cvt_pk_bf16_f32 v{16+i}, v{8+2*i}, v{9+2*i}")
    P("buffer_store_dwordx4 v[16:19], v5, s[12:15], 0 offen")
    P("s_waitcnt vmcnt(0)")
    P("L_rend:")
    P("s_endpgm")
    return P

def gen(cfg):
    main, nst = gen_main(cfg)
    red = gen_reduce(cfg)
    s = HEADER
    s += f"; @launch kernel={KNAME} grid=(256,1,1) block=(256,1,1) lds={cfg.nslots*16384}\n"
    s += "; @launch kernel=red_kernel grid=(256,1,1) block=(448,1,1) lds=0\n"
    s += '.amdgcn_target "amdgcn-amd-amdhsa--gfx950"\n.text\n'
    s += f".globl {KNAME}\n.p2align 8\n.type {KNAME},@function\n" + main.text()
    s += ".globl red_kernel\n.p2align 8\n.type red_kernel,@function\n" + red.text()
    s += kd(KNAME, 512, 96, 256) + kd("red_kernel", 80, 48, 80)
    return s, main.nops

if __name__ == "__main__":
    s, nops = gen(Cfg())
    open('concat_heads__mha_block_cached__mha_block_cached__near_ridge.s', 'w').write(s)
    print("nops inserted", nops, "lines", s.count('\n'))
```

```python
import re

def regs(spec):
    spec = spec.strip()
    if spec.startswith('-'): spec = spec[1:]
    m = re.fullmatch(r'([vas])\[(\d+):(\d+)\]', spec)
    if m: return [f"{m.group(1)}{i}" for i in range(int(m.group(2)), int(m.group(3)) + 1)]
    m = re.fullmatch(r'([vas])(\d+)', spec)
    if m: return [spec]
    if spec in ('vcc_lo', 'vcc_hi'): return ['vcc']
    if spec in ('vcc', 'exec', 'm0', 'scc'): return [spec]
    return []

def R(f, lo, n=1):
    return f"{f}{lo}" if n == 1 else f"{f}[{lo}:{lo+n-1}]"

TRANS = ('v_exp_f32', 'v_log_f32', 'v_rcp_f32', 'v_rsq_f32', 'v_sqrt_f32', 'v_sin_f32', 'v_cos_f32')

class Ins:
    __slots__ = ('text', 'kind', 'rd', 'wr', 'op', 'srcc', 'ws', 'm0', 'm1', 'hookok')
    def __init__(self, text, kind, rd, wr, op, srcc=(), ws=1):
        self.text, self.kind, self.rd, self.wr, self.op, self.srcc, self.ws = text, kind, set(rd), set(wr), op, set(srcc), ws

def parse(text):
    t = text.split(';')[0].strip()
    if not t or t.endswith(':') or t.startswith('.'):
        return Ins(text, 'label', [], [], t, ws=0)
    parts = t.split(None, 1)
    op = parts[0]
    ops = [o.strip() for o in parts[1].split(',')] if len(parts) > 1 else []
    if ops:
        ops[-1] = ops[-1].split()[0] if ops[-1].split() else ops[-1]
    if op == 's_nop':
        return Ins(text, 'nop', [], [], op, ws=int(ops[0], 0) + 1)
    if op.startswith('v_mfma'):
        return Ins(text, 'mfma', regs(ops[1]) + regs(ops[2]) + regs(ops[3]), regs(ops[0]), op, srcc=regs(ops[3]))
    if op.startswith('v_permlane'):
        r = regs(ops[0]) + regs(ops[1])
        return Ins(text, 'valu', r, r, op)
    if op.startswith('v_cmp'):
        rd = []
        for o in ops[1:]: rd += regs(o)
        return Ins(text, 'valu', rd, regs(ops[0]), op)
    if op.startswith('v_'):
        rd = []
        for o in ops[1:]: rd += regs(o)
        wr = regs(ops[0])
        if op.startswith(('v_fmac', 'v_pk_fmac')): rd += wr
        return Ins(text, 'trans' if re.sub(r'_e(32|64)$', '', op) in TRANS else 'valu', rd, wr, op)
    if op.startswith('ds_read'):
        return Ins(text, 'ds', regs(ops[1]), regs(ops[0]), op)
    if op.startswith('ds_write'):
        rd = []
        for o in ops: rd += regs(o)
        return Ins(text, 'ds', rd, [], op)
    if op.startswith('buffer_load') or op.startswith('global_load'):
        if ' lds' in t:
            rd = ['m0']
            for o in ops: rd += regs(o)
            return Ins(text, 'dma', rd, [], op)
        rd = []
        for o in ops[1:]: rd += regs(o)
        return Ins(text, 'vmem', rd, regs(ops[0]), op)
    if op.startswith('buffer_store') or op.startswith('global_store') or op.startswith('buffer_atomic') or op.startswith('global_atomic'):
        rd = []
        for o in ops: rd += regs(o)
        i = Ins(text, 'store', rd, [], op)
        i.srcc = set(regs(ops[0] if op.startswith('buffer') else ops[1]))
        return i
    if op.startswith('s_'):
        if op in ('s_waitcnt', 's_barrier', 's_endpgm', 's_setprio', 's_sleep') or op.startswith(('s_branch', 's_cbranch')):
            return Ins(text, 'ctl', [], [], op)
        rd = []
        for o in ops[1:]: rd += regs(o)
        wr = regs(ops[0]) if not op.startswith('s_cmp') else []
        if op.startswith('s_cmp'): rd += regs(ops[0])
        return Ins(text, 'salu', rd, wr, op)
    return Ins(text, 'other', [], [], op)

def mfma_passes(op):
    return 8 if '32x32' in op else 4

def need(prod, cons):
    n = 0
    pk, ck = prod.kind, cons.kind
    valu_p = pk in ('valu', 'trans')
    valu_c = ck in ('valu', 'trans')
    if valu_p:
        vw = {r for r in prod.wr if r[0] in 'va' and r not in ('vcc',)}
        sw = {r for r in prod.wr if r[0] == 's' or r == 'vcc'}
        if ck == 'mfma' and vw & cons.rd: n = max(n, 2)
        if pk == 'trans' and ck == 'valu' and vw & cons.rd: n = max(n, 1)
        if pk == 'trans' and ck == 'trans' and vw & cons.rd: n = max(n, 1)
        if cons.op.startswith('v_permlane') and vw & cons.rd: n = max(n, 2)
        if cons.op.startswith(('v_readfirstlane', 'v_readlane')) and vw & cons.rd: n = max(n, 1)
        if ck in ('vmem', 'dma', 'store') and sw & cons.rd: n = max(n, 5)
        if valu_c and sw & cons.rd: n = max(n, 2)
        if ck == 'salu' and sw & cons.rd: n = max(n, 2)
        if 'exec' in prod.wr and ck == 'mfma': n = max(n, 4)
    if pk == 'salu':
        if 'm0' in prod.wr and ck == 'dma': n = max(n, 1)
    if pk == 'mfma':
        p = mfma_passes(prod.op)
        d = prod.wr
        if ck == 'mfma':
            ab = cons.rd - cons.srcc
            if d & ab: n = max(n, {4: 8, 8: 12}[p])
            if d & cons.srcc and d != cons.srcc: n = max(n, {4: 6, 8: 10}[p])
            if d & cons.wr and not (cons.srcc == d and cons.wr == d):
                n = max(n, {4: 6, 8: 10}[p])
        elif ck in ('valu', 'trans', 'vmem', 'ds', 'store', 'dma'):
            if d & (cons.rd | cons.wr): n = max(n, {4: 8, 8: 12}[p])
            if valu_c and prod.srcc & cons.wr: n = max(n, {4: 3, 8: 7}[p])
    if pk == 'store' and ('x4' in prod.op or 'x3' in prod.op):
        if prod.srcc & cons.wr: n = max(n, 2)
    return n

class Prog:
    def __init__(self):
        self.ins = []
        self.nops = 0
        self.slowmode = False
    def __call__(self, text):
        for line in text.split('\n'):
            if line.strip(): self.emit(line.strip())
    def emit(self, text):
        c = parse(text)
        if c.kind not in ('label', 'nop', 'ctl'):
            dist = 0; short = 0
            for p in reversed(self.ins):
                if dist >= 20: break
                if p.kind == 'label' and p.op.endswith(':'):
                    continue
                nd = need(p, c)
                if nd > dist: short = max(short, nd - dist)
                dist += p.ws
            while short > 0:
                k = min(short, 16)
                self.ins.append(parse(f"s_nop {k-1}"))
                self.nops += k
                short -= k
        if self.slowmode: c.ws = 0
        self.ins.append(c)
    def slow(self, on): self.slowmode = on
    def text(self):
        out = []
        for i in self.ins:
            out.append(i.text if i.kind == 'label' else "    " + i.text)
        return "\n".join(out) + "\n"
```

```python
import sys, struct
sys.path.insert(0, 'gen')
from asmdsl import Prog, R

KNAME = "concat_heads__mha_block_cached__mha_block_cached__near_ridge_kernel"
HEADER = open('concat_heads__mha_block_cached__mha_block_cached__near_ridge.s.ref').read().split('; Override')[0]

def f32hex(x): return hex(struct.unpack('<I', struct.pack('<f', x))[0])

def kd(name, vgpr, sgpr, acc):
    return f""".section .rodata,"a"
.p2align 6
.amdhsa_kernel {name}
  .amdhsa_next_free_vgpr {vgpr}
  .amdhsa_next_free_sgpr {sgpr}
  .amdhsa_accum_offset {acc}
  .amdhsa_group_segment_fixed_size 0
  .amdhsa_kernarg_size 104
  .amdhsa_user_sgpr_count 2
  .amdhsa_user_sgpr_kernarg_segment_ptr 1
  .amdhsa_system_sgpr_workgroup_id_x 1
.end_amdhsa_kernel
"""

class Cfg:
    nslots = 10
    pd = 5
    kv_flag = "nt"
    w_flag = "nt"
    x_flag = "nt"
    st_flag = ""
    ld_flag = ""
    stamps = False
    stamp_op = "s_memrealtime"
    no_dma = False
    no_barrier = False
    no_x = False
    dbg_wg = None
    spin = None
    mapping = "W"
    def __init__(self, **kw):
        for k, v in kw.items(): setattr(self, k, v)

S_K, S_V, S_WQ, S_WO, S_X, S_WS = 8, 12, 16, 20, 24, 28
S_P, S_B, S_H, S_W = 32, 33, 34, 35
S_LW4K, S_LW2K = 36, 37
S_OFF = 38
S_C = 39
S_T = 40
S_ST = 48
V_X = 0
V_QF = 112
V_QA = 128
V_A = 160
V_OWQ = 192
V_OWQH = 196
V_OK = 198
V_OV = 202
V_OWO = 206
V_AK = 210
V_AT = 214
V_M = 216
V_L = 217
V_MC = 221
V_SO = 222
V_TMP = 223
V_T2 = 224

def gen_main(cfg):
    P = Prog()
    nst = [0]
    def stamp():
        if cfg.stamps:
            P(f"{cfg.stamp_op} s[{S_ST+2*nst[0]}:{S_ST+2*nst[0]+1}]")
            nst[0] += 1
    P(f"{KNAME}:")
    stamp()
    P("s_cmp_ge_u32 s2, 256")
    P("s_cbranch_scc1 L_end")
    P("s_and_b32 s3, s2, 7")
    P("s_lshr_b32 s4, s2, 3")
    if cfg.mapping == "W":
        P("s_and_b32 s5, s4, 3")
        P("s_lshl_b32 s6, s3, 2")
        P("s_add_u32 s5, s5, s6")
        P(f"s_lshr_b32 s{S_P}, s5, 4")
        P(f"s_and_b32 s{S_H}, s5, 15")
        P(f"s_lshr_b32 s{S_B}, s4, 2")
    else:
        P(f"s_lshr_b32 s{S_P}, s3, 2")
        P("s_and_b32 s5, s3, 3")
        P("s_lshl_b32 s5, s5, 1")
        P("s_and_b32 s6, s4, 1")
        P(f"s_add_u32 s{S_B}, s5, s6")
        P(f"s_lshr_b32 s{S_H}, s4, 1")
    P(f"s_mul_i32 s5, s{S_P}, 40")
    P("s_add_u32 s6, s0, s5")
    P("s_addc_u32 s7, s1, 0")
    P("s_load_dwordx4 s[80:83], s[6:7], 0")
    P("s_load_dwordx4 s[84:87], s[6:7], 16")
    P("s_load_dwordx2 s[88:89], s[6:7], 32")
    P("s_load_dwordx2 s[90:91], s[0:1], 96")
    t = V_T2
    L, RR, PC, SWT, W_, T0, T1, T2 = t, t+1, t+2, t+3, t+4, t+5, t+6, t+7
    P(f"v_lshrrev_b32 v{W_}, 6, v0")
    P(f"v_and_b32 v{L}, 63, v0")
    P(f"v_readfirstlane_b32 s{S_W}, v{W_}")
    P(f"v_lshrrev_b32 v{RR}, 3, v{L}")
    P(f"v_and_b32 v{PC}, 7, v{L}")
    P(f"v_and_b32 v{T0}, 2, v{RR}")
    P(f"v_lshlrev_b32 v{T0}, 1, v{T0}")
    P(f"v_xor_b32 v{SWT}, v{PC}, v{T0}")
    P(f"v_lshlrev_b32 v{SWT}, 4, v{SWT}")
    P(f"s_lshl_b32 s{S_LW4K}, s{S_W}, 12")
    P(f"s_lshl_b32 s{S_LW2K}, s{S_W}, 11")
    P(f"v_lshl_add_u32 v{T0}, v{W_}, 5, v{RR}")
    P(f"v_lshl_add_u32 v{T1}, v{T0}, 13, v{SWT}")
    for i in range(4): P(f"v_add_u32 v{V_OWQ+i}, {i*8*8192 - 1024*i}, v{T1}")
    P(f"v_lshrrev_b32 v{T1}, 1, v{RR}")
    P(f"v_xor_b32 v{T1}, v{PC}, v{T1}")
    P(f"v_lshlrev_b32 v{T1}, 4, v{T1}")
    P(f"v_lshl_add_u32 v{T1}, v{T0}, 9, v{T1}")
    P(f"v_xor_b32 v{T2}, 64, v{T1}")
    for i in range(4): P(f"v_add_u32 v{V_OK+i}, {i*8*512 - 1024*i}, v{T1 if i % 2 == 0 else T2}")
    P(f"v_and_b32 v{T1}, 31, v{L}")
    P(f"v_lshl_add_u32 v{T1}, v{W_}, 5, v{T1}")
    P(f"v_mul_u32_u24 v{T1}, 896, v{T1}")
    P(f"v_lshrrev_b32 v{T2}, 5, v{L}")
    P(f"v_lshl_add_u32 v{V_TMP}, v{T2}, 4, v{T1}")
    P(f"v_lshl_add_u32 v{T1}, v{W_}, 4, v{RR}")
    P(f"v_lshl_add_u32 v{T1}, v{T1}, 13, v{SWT}")
    for i in range(2): P(f"v_add_u32 v{V_OWQH+i}, {i*8*8192 - 1024*i}, v{T1}")
    P("s_waitcnt lgkmcnt(0)")
    P(f"s_mul_i32 s5, s{S_B}, 114688")
    P(f"s_add_u32 s{S_X}, s80, s5\ns_addc_u32 s{S_X+1}, s81, 0\ns_mov_b32 s{S_X+2}, 114688\ns_mov_b32 s{S_X+3}, 0x20000")
    P(f"s_lshl_b32 s5, s{S_H}, 9")
    P(f"s_add_u32 s{S_WQ}, s86, s5\ns_addc_u32 s{S_WQ+1}, s87, 0\ns_sub_u32 s{S_WQ+2}, 3670016, s5\ns_mov_b32 s{S_WQ+3}, 0x20000")
    P(f"s_lshl_b32 s5, s{S_B}, 4\ns_add_u32 s5, s5, s{S_H}\ns_lshl_b32 s6, s5, 18")
    P(f"s_add_u32 s{S_K}, s82, s6\ns_addc_u32 s{S_K+1}, s83, 0\ns_mov_b32 s{S_K+2}, 262144\ns_mov_b32 s{S_K+3}, 0x20000")
    P(f"s_add_u32 s{S_V}, s84, s6\ns_addc_u32 s{S_V+1}, s85, 0\ns_mov_b32 s{S_V+2}, 262144\ns_mov_b32 s{S_V+3}, 0x20000")
    P(f"s_mul_i32 s6, s{S_H}, 229376")
    P(f"s_add_u32 s{S_WO}, s88, s6\ns_addc_u32 s{S_WO+1}, s89, 0\ns_mov_b32 s{S_WO+2}, 229376\ns_mov_b32 s{S_WO+3}, 0x20000")
    P(f"s_lshl_b32 s6, s{S_P}, 7\ns_add_u32 s5, s5, s6\ns_mul_i32 s5, s5, 114688")
    P(f"s_add_u32 s{S_WS}, s90, s5\ns_addc_u32 s{S_WS+1}, s91, 0\ns_mov_b32 s{S_WS+2}, 114688\ns_mov_b32 s{S_WS+3}, 0x20000")

    vm = []
    def fl(f): return (" " + f) if f else ""
    for s in range(28):
        if cfg.no_x: continue
        P(f"buffer_load_dwordx4 v[{V_X+4*s}:{V_X+4*s+3}], v{V_TMP}, s[{S_X}:{S_X+3}], 0 offen offset:{32*s}{fl(cfg.x_flag)}")
        vm.append(('x', s))

    stages = []
    for c in range(4):
        for s in range(3): stages.append(('wq', S_WQ, V_OWQ, 4, 128*s*8192 + c*128, S_LW4K, cfg.w_flag))
        stages.append(('wqh', S_WQ, V_OWQH, 2, 384*8192 + c*128, S_LW2K, cfg.w_flag))
        for s in range(4): stages.append(('k', S_K, V_OK, 4, 128*s*512 + c*128, S_LW4K, cfg.kv_flag))
    for s in range(16): stages.append(('v', S_V, V_OV, 4, 32*s*512, S_LW4K, cfg.kv_flag))
    for j in range(7):
        for s in range(2): stages.append(('wo', S_WO, V_OWO, 4, 128*s*896 + j*128, S_LW4K, cfg.w_flag))
    NS = len(stages)
    def dma_groups(s):
        kind, srd, vo, n, so, m0s, f = stages[s]
        g = []
        for i in range(n):
            ins = []
            if i == 0:
                ins.append(f"s_add_u32 m0, s{m0s}, {(s % cfg.nslots)*16384}")
                ins.append(f"s_mov_b32 s{S_OFF}, {so}")
            ins.append(f"buffer_load_dwordx4 v{vo+i}, s[{srd}:{srd+3}], s{S_OFF} offen offset:{1024*i}{fl(f)} lds")
            g.append((ins, ('st', s)))
        return g
    def emit_group(g):
        for x in g[0]:
            if cfg.no_dma and 'lds' in x: continue
            P(x)
        vm.append(g[1])
    npro = cfg.nslots - 2
    for s in range(npro):
        for g in dma_groups(s): emit_group(g)
    stamp()
    P(f"v_lshlrev_b32 v{T1}, 9, v{RR}")
    P(f"v_lshl_add_u32 v{T1}, v{W_}, 7, v{T1}")
    P(f"v_add_u32 v{T1}, v{T1}, v{SWT}")
    for i in range(4): P(f"v_add_u32 v{V_OV+i}, {i*8*512 - 1024*i}, v{T1}")
    P(f"v_mul_u32_u24 v{T1}, 896, v{T0}")
    P(f"v_add_u32 v{T1}, v{T1}, v{SWT}")
    for i in range(4): P(f"v_add_u32 v{V_OWO+i}, {i*8*896 - 1024*i}, v{T1}")
    P(f"v_and_b32 v{T0}, 0x13, v{L}")
    P(f"v_and_b32 v{T1}, 4, v{L}")
    P(f"v_lshl_add_u32 v{T0}, v{T1}, 1, v{T0}")
    P(f"v_and_b32 v{T1}, 8, v{L}")
    P(f"v_lshrrev_b32 v{T1}, 1, v{T1}")
    P(f"v_add_u32 v{T0}, v{T0}, v{T1}")
    P(f"v_bfe_u32 v{T1}, v{T0}, 1, 3")
    P(f"v_lshrrev_b32 v{T2}, 5, v{L}")
    P(f"v_xor_b32 v{T1}, v{T1}, v{T2}")
    P(f"v_lshlrev_b32 v{T1}, 4, v{T1}")
    P(f"v_lshl_add_u32 v{V_AK}, v{T0}, 7, v{T1}")
    for j in range(1, 4): P(f"v_xor_b32 v{V_AK+j}, {32*j}, v{V_AK}")
    P(f"v_bfe_u32 v{T0}, v{L}, 2, 2")
    P(f"v_lshl_add_u32 v{T1}, v{T2}, 3, v{T0}")
    P(f"v_lshlrev_b32 v{T1}, 7, v{T1}")
    P(f"v_lshrrev_b32 v{T0}, 1, v{T0}")
    P(f"v_lshl_add_u32 v{T1}, v{T0}, 6, v{T1}")
    P(f"v_bfe_u32 v{T0}, v{L}, 4, 1")
    P(f"v_lshl_add_u32 v{T1}, v{T0}, 5, v{T1}")
    P(f"v_and_b32 v{T0}, 1, v{L}")
    P(f"v_lshl_add_u32 v{T1}, v{T0}, 4, v{T1}")
    P(f"v_bfe_u32 v{T0}, v{L}, 1, 1")
    P(f"v_lshl_add_u32 v{V_AT}, v{T0}, 3, v{T1}")
    P(f"v_xor_b32 v{V_AT+1}, 64, v{V_AT}")
    P(f"v_mul_u32_u24 v{T0}, 28672, v{W_}")
    P(f"v_lshl_add_u32 v{V_SO}, v{L}, 4, v{T0}")
    P(f"s_mov_b32 s{S_C}, {f32hex(1.4426950408889634/16.0)}")
    P(f"v_mov_b32 v{V_M}, 0xff800000")
    for i in range(4): P(f"v_mov_b32 v{V_L+i}, 0")

    items = []
    def item(stage, reads, B, D, first, pre=None):
        items.append(dict(stage=stage, reads=reads, B=B, D=D, first=first, pre=pre or [], fill=[]))
        return items[-1]
    def trreads(m, rel):
        return [('T', m, rel), ('T', m, rel + 512)]
    def spread(lst, start, n):
        k = len(lst)
        for j in range(n):
            items[start + j]['fill'] += lst[j*k//n:(j+1)*k//n]
    st = 0
    for c in range(4):
        for ks in range(28):
            s = st + ks // 8
            for m in range(2):
                item(s, trreads(m, (ks % 8)*2048), R('v', V_X+4*ks, 4), R('v', V_QA+16*m, 16), ks == 0)
        st += 4
        cv = [f"v_cvt_pk_bf16_f32 v{V_QF+j}, v{V_QA+2*j}, v{V_QA+2*j+1}" for j in range(16)]
        base = len(items)
        for tl in range(16):
            for j in range(4):
                item(st + tl // 4, [('K', j, (tl % 4)*4096)], R('v', V_QF+4*j, 4), R('a', 16*tl, 16), c == 0 and j == 0)
        items[base]['pre'] = cv[0:4]
        items[base]['fill'] += cv[4:8]
        items[base+1]['fill'] += cv[8:12]
        items[base+2]['fill'] += cv[12:16]
        if c == 3:
            def maxcode(tl):
                o = []
                tb = V_T2 + 16*(tl % 2)
                for i in range(16): o.append(f"v_accvgpr_read_b32 v{tb+i}, a{16*tl+i}")
                for i in range(8): o.append(f"v_max3_f32 v{V_M}, v{tb+2*i}, v{tb+2*i+1}, v{V_M}")
                return o
            for tl in range(15):
                spread(maxcode(tl), base + 4*(tl+1) + 1, 3) if tl < 15 else None
            lastmax = maxcode(15)
        st += 4
    def softmax(tl):
        o = []
        pb = V_QA + 8*(tl % 2); tb = V_QA + 16
        for i in range(16):
            o.append(f"v_accvgpr_read_b32 v{tb+i}, a{16*tl+i}")
        for i in range(16):
            o.append(f"v_fma_f32 v{tb+i}, v{tb+i}, s{S_C}, -v{V_MC}")
        for i in range(16):
            o.append(f"v_exp_f32 v{tb+i}, v{tb+i}")
        for i in range(16):
            o.append(f"v_add_f32 v{V_L+i%4}, v{V_L+i%4}, v{tb+i}")
            if i % 2 == 1: o.append(f"v_cvt_pk_bf16_f32 v{pb+i//2}, v{tb+i-1}, v{tb+i}")
        return o
    pre = lastmax + [f"v_mov_b32 v{V_TMP}, v{V_M}", f"v_permlane32_swap_b32 v{V_TMP}, v{V_M}",
                     f"v_max_f32 v{V_M}, v{V_M}, v{V_TMP}", f"v_mul_f32 v{V_MC}, s{S_C}, v{V_M}"] + softmax(0)
    for tl in range(16):
        base = len(items)
        for s2 in range(2):
            for m in range(8):
                item(st + tl, trreads(m % 2, (m//2)*4096 + s2*2048), R('v', V_QA + 8*(tl % 2) + 4*s2, 4), R('v', V_X+16*m, 16), tl == 0 and s2 == 0)
        if tl == 0: items[base]['pre'] = pre
        if tl < 15: spread(softmax(tl+1), base, 16)
        else:
            fin = [f"v_add_f32 v{V_L}, v{V_L}, v{V_L+1}", f"v_add_f32 v{V_L+2}, v{V_L+2}, v{V_L+3}",
                   f"v_add_f32 v{V_L}, v{V_L}, v{V_L+2}", f"v_mov_b32 v{V_TMP}, v{V_L}",
                   f"v_permlane32_swap_b32 v{V_TMP}, v{V_L}", f"v_add_f32 v{V_L}, v{V_L}, v{V_TMP}",
                   f"v_rcp_f32 v{V_L+1}, v{V_L}"]
            spread(fin, base, 7)
    st += 16
    def norm(m):
        o = []
        b = V_X + 16*m
        for i in range(8):
            o.append(f"v_mul_f32 v{b+2*i}, v{b+2*i}, v{V_L+1}")
            o.append(f"v_mul_f32 v{b+2*i+1}, v{b+2*i+1}, v{V_L+1}")
            o.append(f"v_cvt_pk_bf16_f32 v{b+i}, v{b+2*i}, v{b+2*i+1}")
        return o
    def outstore(j):
        o = []
        ab = V_QA if j % 2 == 0 else V_T2
        o.append(f"s_mov_b32 s{S_T}, {j*4096}")
        for m in range(2):
            b = ab + 16*m
            for hf in range(2):
                for i in range(4*hf, 4*hf+4):
                    o.append(f"v_cvt_pk_bf16_f32 v{b+i}, v{b+2*i}, v{b+2*i+1}")
                o.append(('vm', f"buffer_store_dwordx4 v[{b+4*hf}:{b+4*hf+3}], v{V_SO}, s[{S_WS}:{S_WS+3}], s{S_T} offen offset:{(2*m+hf)*1024}{fl(cfg.st_flag)}"))
        return o
    for j in range(7):
        base = len(items)
        ab = V_QA if j % 2 == 0 else V_T2
        for ks in range(16):
            for m in range(2):
                item(st + 2*j + ks // 8, trreads(m, (ks % 8)*2048), R('v', V_X + 16*(ks//2) + 4*(ks % 2), 4), R('v', ab+16*m, 16), ks == 0)
        if j == 0:
            items[base]['pre'] = norm(0)
            for m in range(1, 8): spread(norm(m), base + 4*(m-1), 4)
        else:
            spread(outstore(j-1), base + 3, 12)
    tail = outstore(6)

    N = len(items)
    curbase = {'K': 0, 'T': 0}
    lds = []
    pend = []
    published = -1
    first_of = {}
    for i, it in enumerate(items): first_of.setdefault(it['stage'], i)
    def emitx(x):
        if isinstance(x, tuple):
            P(x[1]); vm.append(('o', 0))
        else: P(x)
    def issue_reads(i):
        nonlocal published, pend
        it = items[i]
        s = it['stage']
        if s > published:
            assert s == published + 1
            for g in pend: emit_group(g)
            pend = []
            idx = max(k for k, tg in enumerate(vm) if tg == ('st', s))
            P(f"s_waitcnt vmcnt({min(63, len(vm)-1-idx)})")
            if not cfg.no_barrier: P("s_barrier")
            if cfg.stamps and s in cfg.stamp_stages: stamp()
            published = s
            ns = s - 2 + cfg.nslots
            if npro <= ns < NS: pend = dma_groups(ns)
        sb = (s % cfg.nslots) * 16384
        ab = V_A + 4*(i % 8)
        for k, (kind, idx, rel) in enumerate(it['reads']):
            off = sb + rel - curbase[kind]
            if off < 0 or off > 65535:
                d = sb - curbase[kind]
                rb, n = (V_AK, 4) if kind == 'K' else (V_AT, 2)
                for q in range(n): P(f"v_add_u32 v{rb+q}, {d & 0xffffffff}, v{rb+q}")
                curbase[kind] = sb
                off = rel
            if kind == 'K': P(f"ds_read_b128 v[{ab}:{ab+3}], v{V_AK+idx} offset:{off}")
            else: P(f"ds_read_b64_tr_b16 v[{ab+2*k}:{ab+2*k+1}], v{V_AT+idx} offset:{off}")
            lds.append(i)
    for i in range(min(cfg.pd, N)): issue_reads(i)
    since = 0
    for i, it in enumerate(items):
        if i + cfg.pd < N: issue_reads(i + cfg.pd)
        for x in it['pre']: emitx(x)
        last = max(k for k, tg in enumerate(lds) if tg == i)
        P(f"s_waitcnt lgkmcnt({len(lds)-1-last})")
        ab = V_A + 4*(i % 8)
        P(f"v_mfma_f32_32x32x16_bf16 {it['D']}, v[{ab}:{ab+3}], {it['B']}, {'0' if it['first'] else it['D']}")
        for x in it['fill']: emitx(x)
        if pend:
            nxt = first_of.get(published + 1, N + cfg.pd) - cfg.pd
            rem = nxt - i
            if rem <= len(pend) * 3 or True:
                spacing = max(1, (rem) // len(pend))
                since += 1
                if since >= min(spacing, 3):
                    emit_group(pend.pop(0)); since = 0
    for x in tail: emitx(x)
    stamp()
    P("s_waitcnt vmcnt(0)")
    stamp()
    if cfg.stamps:
        P("s_waitcnt lgkmcnt(0)")
        P(f"s_add_u32 s{S_T}, s90, 0x4000000\ns_addc_u32 s{S_T+1}, s91, 0\ns_mov_b32 s{S_T+2}, 0x100000\ns_mov_b32 s{S_T+3}, 0x20000")
        P(f"s_lshl_b32 s5, s2, 10\ns_lshl_b32 s6, s{S_W}, 8\ns_add_u32 s5, s5, s6")
        P("v_mov_b32 v1, s5")
        for k in range(nst[0]):
            P(f"v_mov_b32 v2, s{S_ST+2*k}\nv_mov_b32 v3, s{S_ST+2*k+1}")
            P(f"buffer_store_dwordx2 v[2:3], v1, s[{S_T}:{S_T+3}], 0 offen offset:{8*k}")
            P("s_nop 2")
        P("s_waitcnt vmcnt(0)")
        if cfg.dbg_wg is not None:
            P(f"s_cmp_lg_u32 s2, {cfg.dbg_wg}\ns_cbranch_scc1 L_end\ns_cmp_lg_u32 s{S_W}, 0\ns_cbranch_scc1 L_end")
            P("s_load_dwordx2 s[92:93], s[0:1], 88\ns_waitcnt lgkmcnt(0)")
            P(f"s_mov_b32 s{S_T+4}, s92\ns_mov_b32 s{S_T+5}, s93\ns_mov_b32 s{S_T+6}, 256\ns_mov_b32 s{S_T+7}, 0x20000")
            P("v_mov_b32 v1, 0")
            for k in range(nst[0]):
                P(f"s_sub_u32 s5, s{S_ST+2*k}, s{S_ST}\nv_mov_b32 v2, s5")
                P(f"buffer_store_dword v2, v1, s[{S_T+4}:{S_T+7}], 0 offen offset:{4*k}")
                P("s_nop 2")
            P("s_waitcnt vmcnt(0)")
    P("L_end:")
    P("s_endpgm")
    return P, nst[0]

def gen_reduce(cfg):
    P = Prog()
    def fl(f): return (" " + f) if f else ""
    P("red_kernel:")
    if cfg.dbg_wg is not None: P("s_memrealtime s[40:41]")
    P("s_cmp_ge_u32 s2, 256")
    P("s_cbranch_scc1 L_rend")
    P("s_load_dwordx2 s[4:5], s[0:1], 80")
    P("s_load_dwordx2 s[6:7], s[0:1], 96")
    P("s_lshr_b32 s16, s2, 4")
    P("s_and_b32 s17, s2, 15")
    P("v_lshrrev_b32 v1, 3, v0")
    P("v_and_b32 v2, 7, v0")
    P("s_lshl_b32 s18, s17, 3")
    P("v_add_u32 v2, s18, v2")
    P("v_lshrrev_b32 v3, 5, v2")
    P("v_mul_u32_u24 v3, 28672, v3")
    P("v_lshrrev_b32 v4, 1, v1")
    P("v_lshl_add_u32 v3, v4, 10, v3")
    P("v_and_b32 v4, 1, v1")
    P("v_lshlrev_b32 v4, 5, v4")
    P("v_and_b32 v5, 31, v2")
    P("v_add_u32 v4, v4, v5")
    P("v_lshl_add_u32 v3, v4, 4, v3")
    P("s_and_b32 s19, s16, 7")
    P("s_lshl_b32 s19, s19, 7")
    P("v_add_u32 v5, s19, v2")
    P("v_mul_u32_u24 v5, 1792, v5")
    P("v_lshl_add_u32 v5, v1, 4, v5")
    P("s_lshr_b32 s19, s16, 3")
    P("s_mul_i32 s19, s19, 896")
    P("v_add_u32 v5, s19, v5")
    P("s_mul_i32 s20, s16, 1835008")
    P("s_waitcnt lgkmcnt(0)")
    P("s_add_u32 s8, s6, s20\ns_addc_u32 s9, s7, 0\ns_mov_b32 s10, 1835008\ns_mov_b32 s11, 0x20000")
    P("s_mov_b32 s12, s4\ns_mov_b32 s13, s5\ns_mov_b32 s14, 1835008\ns_mov_b32 s15, 0x20000")
    for h in range(16):
        P(f"s_mov_b32 s{24+h}, {h*114688}")
        P(f"buffer_load_dwordx4 v[{16+4*h}:{19+4*h}], v3, s[8:11], s{24+h} offen{fl(cfg.ld_flag)}")
    P("s_mov_b32 s21, 0xffff0000")
    for h in range(16):
        P(f"s_waitcnt vmcnt({15-h})")
        for i in range(4):
            r = 16 + 4*h + i
            if h == 0:
                P(f"v_lshlrev_b32 v{8+2*i}, 16, v{r}")
                P(f"v_and_b32 v{9+2*i}, s21, v{r}")
            else:
                P(f"v_lshlrev_b32 v6, 16, v{r}")
                P(f"v_and_b32 v7, s21, v{r}")
                P(f"v_add_f32 v{8+2*i}, v{8+2*i}, v6")
                P(f"v_add_f32 v{9+2*i}, v{9+2*i}, v7")
    for i in range(4): P(f"v_cvt_pk_bf16_f32 v{16+i}, v{8+2*i}, v{9+2*i}")
    P("buffer_store_dwordx4 v[16:19], v5, s[12:15], 0 offen")
    P("s_waitcnt vmcnt(0)")
    if cfg.dbg_wg is not None:
        P("s_memrealtime s[42:43]")
        P(f"s_cmp_lg_u32 s2, {cfg.dbg_wg}\ns_cbranch_scc1 L_rend")
        P("s_load_dwordx2 s[44:45], s[0:1], 88\ns_waitcnt lgkmcnt(0)")
        P("s_mov_b32 s12, s44\ns_mov_b32 s13, s45\ns_mov_b32 s14, 64\ns_mov_b32 s15, 0x20000")
        P(f"s_add_u32 s8, s6, {0x4000000 + cfg.dbg_wg*1024}\ns_addc_u32 s9, s7, 0\ns_mov_b32 s10, 256\ns_mov_b32 s11, 0x20000")
        P("v_lshlrev_b32 v1, 3, v0\nv_mov_b32 v4, 0")
        P("buffer_load_dword v2, v1, s[8:11], 0 offen\nbuffer_load_dword v3, v4, s[8:11], 0 offen")
        P("v_mov_b32 v6, s40\nv_mov_b32 v7, s42")
        P("s_waitcnt vmcnt(0)")
        P("v_cmp_eq_u32 vcc, 14, v0\ns_nop 1\nv_cndmask_b32 v2, v2, v6, vcc")
        P("v_cmp_eq_u32 vcc, 15, v0\ns_nop 1\nv_cndmask_b32 v2, v2, v7, vcc")
        P("v_sub_u32 v2, v2, v3\nv_lshlrev_b32 v1, 2, v0")
        P("buffer_store_dword v2, v1, s[12:15], 0 offen\ns_waitcnt vmcnt(0)")
        P(f"s_add_u32 s8, s6, {0x4800000}\ns_addc_u32 s9, s7, 0\ns_mov_b32 s10, 64\ns_mov_b32 s11, 0x20000")
        P("v_cmp_eq_u32 vcc, 13, v0\ns_nop 1\nv_cndmask_b32 v2, v2, v3, vcc")
        P("buffer_store_dword v2, v1, s[8:11], 0 offen\ns_waitcnt vmcnt(0)")
    P("L_rend:")
    P("s_endpgm")
    return P

def gen_spin(cfg):
    P = Prog()
    P("spin_kernel:")
    P("s_cmp_ge_u32 s2, 1\ns_cbranch_scc1 L_send")
    P("s_load_dwordx2 s[6:7], s[0:1], 96\ns_waitcnt lgkmcnt(0)")
    P(f"s_add_u32 s8, s6, {0x4800000}\ns_addc_u32 s9, s7, 0\ns_mov_b32 s10, 64\ns_mov_b32 s11, 0x20000")
    P("v_mov_b32 v1, 0")
    P(f"buffer_load_dword v2, v1, s[8:11], 0 offen offset:{4*cfg.spin}\nbuffer_load_dword v3, v1, s[8:11], 0 offen offset:52")
    P("s_waitcnt vmcnt(0)")
    P("v_readfirstlane_b32 s12, v2\nv_readfirstlane_b32 s13, v3")
    P("s_min_u32 s12, s12, 20000\ns_add_u32 s12, s12, 12000")
    P("L_spin:")
    P("s_memrealtime s[14:15]\ns_waitcnt lgkmcnt(0)")
    P("s_sub_u32 s14, s14, s13\ns_cmp_lt_u32 s14, s12\ns_cbranch_scc1 L_spin")
    P("L_send:\ns_endpgm")
    return P

def gen(cfg):
    main, nst = gen_main(cfg)
    red = gen_reduce(cfg)
    s = HEADER
    s += f"; @launch kernel={KNAME} grid=(256,1,1) block=(256,1,1) lds={cfg.nslots*16384}\n"
    s += "; @launch kernel=red_kernel grid=(256,1,1) block=(448,1,1) lds=0\n"
    if cfg.spin is not None: s += "; @launch kernel=spin_kernel grid=(1,1,1) block=(64,1,1) lds=0\n"
    s += '.amdgcn_target "amdgcn-amd-amdhsa--gfx950"\n.text\n'
    s += f".globl {KNAME}\n.p2align 8\n.type {KNAME},@function\n" + main.text()
    s += ".globl red_kernel\n.p2align 8\n.type red_kernel,@function\n" + red.text()
    if cfg.spin is not None: s += ".globl spin_kernel\n.p2align 8\n.type spin_kernel,@function\n" + gen_spin(cfg).text()
    s += kd(KNAME, 512, 96, 256) + kd("red_kernel", 80, 48, 80)
    if cfg.spin is not None: s += kd("spin_kernel", 8, 32, 8)
    return s, main.nops

if __name__ == "__main__":
    s, nops = gen(Cfg())
    open('concat_heads__mha_block_cached__mha_block_cached__near_ridge.s', 'w').write(s)
    print("nops inserted", nops, "lines", s.count('\n'))
```

```python
import sys, struct
sys.path.insert(0, 'gen')
from asmdsl import Prog, R
from gen1 import KNAME, HEADER, f32hex, kd

class Cfg:
    nslots = 10
    pd = 6
    kv_flag = "nt"
    w_flag = ""
    wo_flag = ""
    x_flag = ""
    st_flag = "sc0 sc1"
    ld_flag = "sc0 sc1"
    out_flag = ""
    stamps = False
    stamp_op = "s_memrealtime"
    stamp_events = ()
    code_pf2 = 13
    no_dma = False
    dma_gap = 3
    kv_gap = 2
    ahead = 2
    ahead0 = 3
    ramp_ev = 14
    q_ahead = 3
    wo_ahead = 99
    wo_free = 46
    npro = 5
    pro_split = 2
    spin_max = 200000
    st_start = 40
    st_gap = 6
    t_flag = 40
    groups = (4, 3)
    keeps = (6,)
    early_a = None
    t_pa = 209
    ones = True
    lastsplit = True
    maxn = 3
    pf3 = ()
    pad = 0
    out_gap = 1
    wo_req = (27, 31, 35, 39, 17, 22, 44, 44, 45, 45, 46, 47, 47, 47)
    w64 = True
    instream = None
    swin = True
    kst = {4: 58, 9: 86, 14: 138}
    kst_gap = 2
    wopf = (18, 20, 22, 24, 26, 28, 30)
    sextra = 0
    extra = 0
    extra_end = 176
    kreq = ()
    cw = 6
    pvroom = 4
    boost = ()
    pool = True
    wo_early = ()
    probe_at = 20
    race_beg = 4
    races = (86, 118)
    race_len = 22
    dump_score = False
    force = None
    iod = None
    rot = 3
    def __init__(self, **kw):
        for k, v in kw.items(): setattr(self, k, v)

PART = 114688
FLAG_OFF = 0x2000000
S_K, S_V, S_WQ, S_WO, S_X, S_WS = 8, 12, 16, 20, 24, 28
S_P, S_B, S_H, S_W = 32, 33, 34, 35
S_LW4K, S_LEAD, S_OFF, S_C = 36, 37, 38, 39
S_T = 40
S_FL = 44
S_ST = 48
S_DB = 76
S_ROT = 64
S_RD = S_X
S_OUT = S_WQ
V_X = 0
V_QA = 128
V_A = 160
V_OWQ, V_OX, V_OK, V_OV, V_OWO, V_AK, V_AT = 192, 196, 200, 204, 208, 212, 216
V_M, V_MC = 220, 222
V_T2 = 224
V_AX, V_G4, V_LANE = 240, 242, 243
V_SO, V_FO, V_RDY, V_VF = 192, 193, 194, 195
V_L = 196
V_VR, V_VO, V_PV, V_FV = 200, 201, 202, 203
V_KW = 222
V_ONE, V_SUM = 244, 248

def cost(x):
    op = x.split()[0]
    if op.startswith('s_'): return 'S'
    if op in ('v_exp_f32', 'v_rcp_f32'): return 2
    return 1

def gen_main(cfg):
    P = Prog()
    ROT = 80 if cfg.stamps else S_ROT
    LOC = True
    RB = 72 if not cfg.stamps else 72
    RA = [(56+2*k, 57+2*k) for k in range(4)] if not cfg.stamps else [(87, 88), (89, 101), (95, 100), (94, 7)]
    WGS = 262144 if LOC else PART
    PSH = 8 if LOC else 5
    FOFF = 0x6000000 if LOC else FLAG_OFF
    nst = [0]
    def stamp():
        if cfg.stamps:
            P(f"{cfg.stamp_op} s[{S_ST+2*nst[0]}:{S_ST+2*nst[0]+1}]")
            nst[0] += 1
    def fl(f): return (" " + f) if f else ""
    def srd(b, lo, off, size):
        return [f"s_add_u32 s{b}, s{lo}, {off}\ns_addc_u32 s{b+1}, s{lo+1}, 0", f"s_mov_b32 s{b+2}, {size}", f"s_mov_b32 s{b+3}, 0x20000"]
    P(f"{KNAME}:")
    stamp()
    P("s_cmp_ge_u32 s2, 256")
    P("s_cbranch_scc1 L_end")
    P("s_and_b32 s3, s2, 7")
    P(f"s_lshr_b32 s{S_P}, s3, 2")
    P(f"s_mul_i32 s5, s{S_P}, 40")
    P("s_add_u32 s6, s0, s5")
    P("s_addc_u32 s7, s1, 0")
    P("s_load_dwordx4 s[80:83], s[6:7], 0")
    P("s_load_dwordx4 s[84:87], s[6:7], 16")
    P("s_load_dwordx2 s[88:89], s[6:7], 32")
    P("s_load_dwordx2 s[90:91], s[0:1], 96")
    P("s_load_dwordx4 s[96:99], s[0:1], 80")
    P("s_lshr_b32 s4, s2, 3")
    P("s_and_b32 s5, s4, 3")
    P("s_and_b32 s6, s3, 3")
    P("s_lshl_b32 s6, s6, 2")
    P(f"s_add_u32 s{S_H}, s5, s6")
    P(f"s_lshr_b32 s{S_B}, s4, 2")
    vm = []
    P("s_getpc_b64 s[92:93]")
    P("s_and_b32 s92, s92, 0xffffff00")
    P("s_lshl_b32 s7, s5, 14")
    P("v_lshlrev_b32 v250, 6, v0")
    P("v_add_u32 v250, s7, v250")
    P("v_min_u32 v250, CODE_END_OFF - 64, v250")
    P("global_load_dword v251, v250, s[92:93]")
    vm.append(('pf', 0))
    RR, PC, SWP, W_, T0, T1, T2, SWK, T3 = range(V_T2, V_T2+9)
    L = V_LANE
    P(f"v_lshrrev_b32 v{W_}, 6, v0")
    P(f"v_and_b32 v{L}, 63, v0")
    P(f"v_readfirstlane_b32 s{S_W}, v{W_}")
    P(f"v_lshrrev_b32 v{RR}, 3, v{L}")
    P(f"v_and_b32 v{PC}, 7, v{L}")
    P(f"v_lshrrev_b32 v{T1}, 1, v{RR}")
    P(f"v_xor_b32 v{SWK}, v{PC}, v{T1}")
    P(f"v_lshlrev_b32 v{SWK}, 4, v{SWK}")
    P(f"s_lshl_b32 s{S_LW4K}, s{S_W}, 12")
    P(f"v_lshl_add_u32 v{T0}, v{W_}, 5, v{RR}")
    P(f"v_mul_u32_u24 v{T0}, 896, v{T0}")
    P(f"v_add_u32 v{T1}, v{T0}, v{SWK}")
    P(f"v_xor_b32 v{T2}, 64, v{T1}")
    for i in range(4): P(f"v_add_u32 v{V_OX+i}, {i*8*896 - 1024*i}, v{T1 if i % 2 == 0 else T2}")
    P(f"v_and_b32 v{T1}, 2, v{RR}")
    P(f"v_xor_b32 v{T1}, v{PC}, v{T1}")
    P(f"v_lshlrev_b32 v{T1}, 4, v{T1}")
    P(f"v_lshl_add_u32 v{T1}, v{W_}, 7, v{T1}")
    P(f"v_lshl_add_u32 v{T1}, v{RR}, 13, v{T1}")
    P(f"v_xor_b32 v{T2}, 64, v{T1}")
    for i in range(4): P(f"v_add_u32 v{V_OWQ+i}, {i*8*8192 - 1024*i}, v{T1 if i % 2 == 0 else T2}")
    P(f"s_mul_i32 s5, s{S_B}, 114688")
    P(f"s_lshl_b32 s6, s{S_H}, 9")
    P(f"s_mov_b32 s{S_X+2}, 114688\ns_mov_b32 s{S_X+3}, 0x20000")
    P(f"s_sub_u32 s{S_WQ+2}, 3670016, s6\ns_mov_b32 s{S_WQ+3}, 0x20000")
    if cfg.rot == 2: P(f"s_xor_b32 s7, s{S_H}, s{S_B}\ns_and_b32 s7, s7, 1\ns_lshl_b32 s7, s7, 2")
    if cfg.rot == 4: P(f"s_add_u32 s7, s{S_H}, s{S_B}\ns_and_b32 s7, s7, 3\ns_lshl_b32 s7, s7, 1")
    if cfg.rot == 3: P(f"s_add_u32 s7, s{S_H}, s{S_B}\ns_and_b32 s7, s7, 3\ns_lshl_b32 s7, s7, 2\ns_lshr_b32 s7, 0x5025, s7\ns_and_b32 s7, s7, 7")
    if cfg.rot == 7: P(f"s_and_b32 s7, s{S_H}, 3\ns_lshl_b32 s7, s7, 1\ns_add_u32 s7, s7, s{S_B}\ns_sub_u32 s94, s7, 7\ns_min_u32 s7, s7, s94")
    if cfg.rot == 23: P(f"s_xor_b32 s7, s{S_H}, s{S_B}\ns_and_b32 s7, s7, 1\ns_mul_i32 s7, s7, 3")
    if cfg.rot: P("s_lshl_b32 s94, s7, 7\ns_lshl_b32 s95, s7, 19")
    P("s_waitcnt lgkmcnt(0)")
    P(f"s_add_u32 s{S_X}, s80, s5\ns_addc_u32 s{S_X+1}, s81, 0")
    P(f"s_add_u32 s{S_WQ}, s86, s6\ns_addc_u32 s{S_WQ+1}, s87, 0")

    ST = {}
    for j in range(7): ST[('x', j)] = (S_X, V_OX, 128*j, cfg.x_flag)
    for s in range(14): ST[('wq', s)] = (S_WQ, V_OWQ, 32*s*8192, cfg.w_flag)
    for s in range(16): ST[('k', s)] = (S_K, V_OK, 32*s*512, cfg.kv_flag)
    for s in range(16): ST[('v', s)] = (S_V, V_OV, 32*s*512, cfg.kv_flag)
    for s in range(14): ST[('wo', s)] = (S_WO, V_OWO, None, cfg.wo_flag)
    events = []
    for s in range(14): events.append(([('x', s//2)] if s % 2 == 0 else []) + [('wq', s)])
    for s in range(16): events.append([('k', s)])
    for s in range(16): events.append(([('wo', s//4)] if s % 4 == 0 else []) + [('v', s)])
    events += [[], []]
    for j in range(2, 7): events.append([('wo', 2*j), ('wo', 2*j+1)])
    order = [s for e in events for s in e]
    for k, e_ in enumerate(cfg.kreq):
        tgt = next((s_ for s_ in order if s_[0] in ('x', 'wq') and [i_ for i_, l_ in enumerate(events) if s_ in l_][0] - cfg.q_ahead > e_), None)
        if tgt is not None:
            order.remove(('k', k)); order.insert(order.index(tgt), ('k', k))
    order = [s_ for s_ in order if s_[0] != 'wo']
    woq = sorted(range(14), key=lambda k_: cfg.wo_req[k_] if k_ < len(cfg.wo_req) else 100 + k_)
    slot_of = {}
    free = list(range(cfg.nslots))
    nload = [0]
    ev_of = {s: e for e, l in enumerate(events) for s in l}
    def next_stages(e, maxn):
        g = []; n = 0
        while free and n < maxn:
            s = order[nload[0]] if nload[0] < len(order) else None
            if s is not None:
                if s[0] == 'k' and s[1] < len(cfg.kreq):
                    if e < cfg.kreq[s[1]]: s = None
                elif s[0] in 'kv':
                    dist = sum(1 for e_ in range(e + 1, ev_of[s] + 1) if not (events[e_][-1][0] == 'k' and events[e_][-1][1] in cfg.kst))
                    if dist > (cfg.ahead0 if e < cfg.ramp_ev else cfg.ahead + (1 if e in cfg.boost else 0)): s = None
                elif e >= 0 and ev_of[s] - e > cfg.q_ahead: s = None
            if s is not None: nload[0] += 1
            elif woq and e >= (cfg.wo_req[woq[0]] if woq[0] < len(cfg.wo_req) else 44) and (len(free) > 1 or nload[0] >= len(order)): s = ('wo', woq.pop(0))
            else: break
            n += 1
            slot_of[s] = free.pop(0)
            sr, vo, so, f = ST[s]
            if s[0] == 'k' and s[1] in cfg.kst:
                g.append(('V', f"v_add_u32 v{V_KW+1}, {slot_of[s]*16384}, v{V_KW}", s))
                if cfg.w64:
                    for i in range(8): g.append(('W', f"ds_write_b64 v{V_KW+1}, a[{16*s[1]+2*i}:{16*s[1]+2*i+1}] offset:{1024*(i//2) + 8*(i % 2)}", s))
                else:
                    for i in range(4): g.append(('W', f"ds_write_b128 v{V_KW+1}, a[{16*s[1]+4*i}:{16*s[1]+4*i+3}] offset:{1024*i}", s))
                continue
            g.append(('S', f"s_add_u32 m0, s{S_LW4K}, {slot_of[s]*16384}"))
            soff = f"s{S_OFF}"
            if s[0] == 'wo':
                if s[1] % 2 == 0: soff = f"s{ROT + s[1]//2}"
                else: g.append(('S', f"s_add_u32 s{S_OFF}, s{ROT + s[1]//2}, {128*896}"))
            elif cfg.rot and s[0] in ('x', 'wq'):
                rr, tot = (94, 7*128) if s[0] == 'x' else (95, 14*32*8192)
                if so == 0: soff = f"s{rr}"
                else:
                    g.append(('S', f"s_add_u32 s{S_OFF}, s{rr}, {so}"))
                    g.append(('S', f"s_sub_u32 s100, s{S_OFF}, {tot}"))
                    g.append(('S', f"s_min_u32 s{S_OFF}, s{S_OFF}, s100"))
            elif so == 0: soff = "0"
            else: g.append(('S', f"s_mov_b32 s{S_OFF}, {so}"))
            for i in range(4):
                g.append(('D', f"buffer_load_dwordx4 v{vo+i}, s[{sr}:{sr+3}], {soff} offen offset:{1024*i}{fl(f)} lds", s))
        return g
    def emit_dma(x):
        if x[0] == 'S': P(x[1])
        elif x[0] == 'V':
            idx = max(k for k, tg in enumerate(vm) if tg == x[2])
            if idx > waited[0]: P(f"s_waitcnt vmcnt({min(63, len(vm)-1-idx)})")
            P(x[1])
        elif x[0] == 'W':
            P(x[1]); lds.append(10**6); wpos[x[2]] = len(lds) - 1
        else:
            if not cfg.no_dma: P(x[1])
            vm.append(x[2])
    lds = []; wpos = {}; waited = [-1]; ldone = [-1]
    for x in next_stages(-1, cfg.pro_split): emit_dma(x)
    P(f"v_lshrrev_b32 v{T2}, 4, v{L}")
    P(f"v_and_b32 v{T3}, 15, v{L}")
    P(f"v_lshrrev_b32 v244, 1, v{T3}")
    P(f"v_xor_b32 v{T1}, v244, v{T2}")
    P(f"v_lshlrev_b32 v{T1}, 4, v{T1}")
    P(f"v_lshl_add_u32 v{T1}, v{T3}, 7, v{T1}")
    P(f"v_lshl_add_u32 v{V_AX}, v{W_}, 12, v{T1}")
    P(f"v_xor_b32 v{V_AX+1}, 64, v{V_AX}")
    P(f"v_lshrrev_b32 v{T1}, 1, v{T2}")
    P(f"v_xor_b32 v{T1}, v{T1}, v244")
    P(f"v_lshlrev_b32 v{T1}, 4, v{T1}")
    P(f"v_lshl_add_u32 v{T1}, v{T3}, 7, v{T1}")
    P(f"v_and_b32 v{T3}, 1, v{T2}")
    P(f"v_lshl_add_u32 v{V_AK}, v{T3}, 3, v{T1}")
    for j in range(1, 4): P(f"v_xor_b32 v{V_AK+j}, {32*j}, v{V_AK}")
    P(f"v_bfe_u32 v244, v{L}, 2, 2")
    P(f"v_lshl_add_u32 v{T1}, v{T2}, 3, v244")
    P(f"v_lshlrev_b32 v{T1}, 7, v{T1}")
    P(f"v_lshrrev_b32 v244, 1, v244")
    P(f"v_lshl_add_u32 v244, v{T3}, 1, v244")
    P(f"v_lshl_add_u32 v{T1}, v244, 5, v{T1}")
    P(f"v_and_b32 v244, 3, v{L}")
    P(f"v_lshl_add_u32 v{V_AT}, v244, 3, v{T1}")
    for j in range(1, 4): P(f"v_xor_b32 v{V_AT+j}, {32*j}, v{V_AT}")
    P(f"v_lshlrev_b32 v{V_G4}, 9, v{T2}")
    P(f"v_lshl_add_u32 v{T1}, v{W_}, 7, v{SWK}")
    P(f"v_lshl_add_u32 v{T1}, v{RR}, 9, v{T1}")
    P(f"v_xor_b32 v{T2}, 64, v{T1}")
    for i in range(4): P(f"v_add_u32 v{V_OK+i}, {i*8*512 - 1024*i}, v{T1 if i % 2 == 0 else T2}")
    P(f"v_and_b32 v{T1}, 6, v{RR}")
    P(f"v_xor_b32 v{SWP}, v{PC}, v{T1}")
    P(f"v_lshlrev_b32 v{SWP}, 4, v{SWP}")
    P(f"v_lshl_add_u32 v{T1}, v{W_}, 7, v{SWP}")
    P(f"v_lshl_add_u32 v{T1}, v{RR}, 9, v{T1}")
    for i in range(4): P(f"v_add_u32 v{V_OV+i}, {i*8*512 - 1024*i}, v{T1}")
    P(f"v_add_u32 v{T1}, v{T0}, v{SWP}")
    for i in range(4): P(f"v_add_u32 v{V_OWO+i}, {i*8*896 - 1024*i}, v{T1}")
    P(f"v_mov_b32 v{V_M}, 0xff800000\nv_mov_b32 v{V_M+1}, 0xff800000")
    P(f"v_lshlrev_b32 v{V_KW}, 4, v{L}\nv_add_u32 v{V_KW}, s{S_LW4K}, v{V_KW}")
    P(f"s_mov_b32 s{S_C}, {f32hex(1.4426950408889634/16.0)}")
    P(f"s_or_b32 s{S_LEAD}, s{S_H}, s{S_W}")
    P(f"s_lshl_b32 s5, s{S_B}, 4\ns_add_u32 s5, s5, s{S_H}\ns_lshl_b32 s6, s5, 18")
    for x in srd(S_K, 82, "s6", 262144) + srd(S_V, 84, "s6", 262144): P(x)
    P(f"s_mul_i32 s6, s{S_H}, 229376")
    for x in srd(S_WO, 88, "s6", 229376): P(x)
    P(f"s_lshl_b32 s6, s{S_P}, 7\ns_add_u32 s5, s5, s6\ns_mul_i32 s5, s5, {WGS}")
    for x in srd(S_WS, 90, "s5", WGS): P(x)
    P(f"s_lshl_b32 s4, s{S_P}, 3\ns_add_u32 s4, s4, s{S_B}")
    P(f"s_lshl_b32 s5, s4, 9\ns_add_u32 s5, s5, {FOFF}")
    for x in srd(S_FL, 90, "s5", 512): P(x)
    P(f"s_lshl_b32 s5, s4, 2")
    for x in srd(S_DB, 98, "s5", 4): P(x)
    P(f"s_cmp_eq_u32 s{S_B}, 7\ns_cselect_b32 s5, 3, s{S_B}\ns_lshl_b32 s{ROT}, s5, 7")
    for j in range(1, 7):
        P(f"s_add_u32 s{ROT+j}, s{ROT+j-1}, 128\ns_cmp_eq_u32 s{ROT+j}, 896\ns_cselect_b32 s{ROT+j}, 0, s{ROT+j}")
    P(f"v_and_b32 v246, 1, v{L}\nv_lshrrev_b32 v247, 1, v{L}")
    P(f"v_and_b32 v244, 1, v247\nv_lshlrev_b32 v244, 12, v244\nv_lshl_add_u32 v244, v247, 7, v244\nv_lshl_add_u32 v244, v246, 13, v244")
    P(f"s_lshl_b32 s5, s{S_W}, 10\ns_add_u32 s5, s5, 0x38000")
    P(f"v_add_u32 v246, 1, v246")
    P(f"s_add_u32 s{RB}, s{S_WS}, s5\ns_addc_u32 s{RB+1}, s{S_WS+1}, 0")
    P(f"v_add_u32 v244, s5, v244")
    probe_st = [f"s_mov_b64 exec, {(1 << (2*len(cfg.races))) - 1}", f"buffer_store_dword v246, v244, s[{S_WS}:{S_WS+3}], 0 offen sc0 sc1", "s_mov_b64 exec, -1"]
    P(f"s_mov_b32 s{RB+3}, 0")
    P(f"v_lshlrev_b32 v{T1}, 3, v{L}")
    P(f"v_mov_b32 v248, 0\nv_mov_b32 v249, 0")
    P(f"s_cmp_lg_u32 s{S_LEAD}, 0\ns_cbranch_scc1 L_nz")
    P.slow(True)
    P(f"buffer_store_dwordx2 v[248:249], v{T1}, s[{S_FL}:{S_FL+3}], 0 offen sc0 sc1")
    P.slow(False)
    P("L_nz:")
    zero_mark = len(vm)
    for x in next_stages(-1, cfg.npro - cfg.pro_split): emit_dma(x)
    stamp()

    items = []
    fifo = []
    def item(stage, reads, B, D, first, A=None):
        items.append(dict(stage=stage, ev=ev_of[stage], reads=reads, B=B, D=D, first=first, A=A, pre=[], mem=[], ops=[]))
    def forced(lst, start, n):
        k = len(lst)
        for j in range(n):
            for x in lst[j*k//n:(j+1)*k//n]: fifo.append((start + j, start + j, x))
    def window(lst, rel, dl):
        for x in lst:
            for y in x.split('\n') if not x.startswith('s_add_u32 s') or '\ns_addc' not in x else [x]:
                fifo.append((rel, dl, y))
    def acc(f, base, mt): return [R(f, base + 16*(mt//2) + 8*u + 4*(mt % 2), 4) for u in range(2)]
    def frag(base, a): return [R('v', base + 16*a + 8*u, 4) for u in range(2)]
    for s in range(14):
        xb = V_QA + 16*((s//2) % 2) + 8*(s % 2)
        for mt in range(16):
            rel = (mt//4)*4096
            item(('wq', s), [('T', mt % 4, rel), ('T', mt % 4, rel + 512)], [R('v', xb, 4), R('v', xb+4, 4)], acc('v', V_X, mt), s == 0)
    items[cfg.probe_at]['mem'] = probe_st
    for t_, i0_ in cfg.kst.items():
        for i in range(4):
            it_ = i0_ + cfg.kst_gap*i
            while items[it_]['mem'] or it_ % 16 == 9: it_ += 1
            items[it_]['mem'] = [f"s_mov_b32 s{S_T+1}, {32*t_*512}", (f"buffer_load_dwordx4 a[{16*t_+4*i}:{16*t_+4*i+3}], v{V_OK+i}, s[{S_K}:{S_K+3}], s{S_T+1} offen offset:{1024*i}{fl(cfg.kv_flag)}", ('k', t_))]
    for k, t_ in enumerate(cfg.wopf):
        pre_ = [f"s_mul_i32 s{S_T+2}, s{S_B}, 28672", f"s_mul_i32 s{S_T+3}, s{S_W}, 7168", f"s_add_u32 s{S_T+2}, s{S_T+2}, s{S_T+3}", f"v_lshlrev_b32 v253, 4, v{V_LANE}"] if k == 0 else [f"s_add_u32 s{S_T+2}, s{S_T+2}, 1024"]
        while items[t_]['mem'] or t_ % 16 == 9: t_ += 1
        items[t_]['mem'] = pre_ + [f"buffer_load_dwordx4 a[0:3], v253, s[{S_WO}:{S_WO+3}], s{S_T+2} offen"]
    for k, r0 in enumerate(cfg.races):
        a_, b_ = RA[k]
        off = (k & 1)*4096 + k*128
        items[r0]['race'] = [f"s_mov_b32 s{a_}, 0", f"s_mov_b32 s{b_}, 0", f"s_mov_b32 s{RB+2}, 0"]
        first, second = ((a_, off), (b_, off + 8192)) if k % 2 == 0 else ((b_, off + 8192), (a_, off))
        items[r0+1]['race'] = [f"s_load_dword s{first[0]}, s[{RB}:{RB+1}], {first[1]}", f"s_load_dword s{second[0]}, s[{RB}:{RB+1}], {second[1]}"]
        for t_ in range(r0 + cfg.race_beg, r0 + cfg.race_len):
            items[t_]['race'] = [f"s_or_b32 s6, s{a_}, s{b_}", f"s_cmp_eq_u32 s{RB+2}, 0", f"s_cselect_b32 s{RB+2}, s6, s{RB+2}"]
        if cfg.dump_score: items[r0 + cfg.race_len]['race'] = [f"s_lshl_b32 s{RB+3}, s{RB+3}, 4", f"s_or_b32 s{RB+3}, s{RB+3}, s{RB+2}"]
        else: items[r0 + cfg.race_len]['race'] = [f"s_cmp_eq_u32 s{RB+2}, 1", f"s_addc_u32 s{RB+3}, s{RB+3}, 0", f"s_cmp_eq_u32 s{RB+2}, 2", f"s_subb_u32 s{RB+3}, s{RB+3}, 0"]
    def pack(a):
        o = []
        for u in range(2):
            b = V_X + 16*a + 8*u
            o += [f"v_cvt_pk_bf16_f32 v{b+i}, v{b+2*i}, v{b+2*i+1}" for i in range(4)]
        return o
    def maxcode(tl):
        o = []
        tb = V_T2
        for i in range(8):
            o.append(f"v_accvgpr_read_b32 v{tb+2*i}, a{16*tl+2*i}")
            o.append(f"v_accvgpr_read_b32 v{tb+2*i+1}, a{16*tl+2*i+1}")
            if i > 0: o.append(f"v_max3_f32 v{V_M+(i-1)//4}, v{tb+2*i-2}, v{tb+2*i-1}, v{V_M+(i-1)//4}")
        o.append(f"v_max3_f32 v{V_M+1}, v{tb+14}, v{tb+15}, v{V_M+1}")
        return o
    qend = len(items)
    for tl in range(16):
        for a in range(8):
            for T in range(2):
                rel = (a//2)*4096 + T*2048
                item(('k', tl), [('K', 2*(a % 2), rel), ('K', 2*(a % 2) + 1, rel)], frag(V_X, a), acc('a', 16*tl, T), a == 0)
    for a in range(8): window(pack(a), qend - 16 + 2*a + 3, qend + 2*a - 1)
    G, Ta, Tb = 245, 246, 247
    misc1 = [f"v_sub_u32 v{V_AT+j}, v{V_AT+j}, v{V_G4}" for j in range(4)] + [
        f"s_lshr_b32 s5, s{S_W}, 1\ns_lshl_b32 s5, s5, 14\ns_and_b32 s6, s{S_W}, 1\ns_lshl_b32 s6, s6, 12\ns_add_u32 s5, s5, s6",
        f"v_lshlrev_b32 v{V_SO}, 4, v{L}", f"v_and_b32 v{V_SO}, 0x70, v{V_SO}",
        f"v_lshrrev_b32 v{G}, 4, v{L}", f"v_lshl_add_u32 v{V_SO}, v{G}, 7, v{V_SO}",
        f"v_bfe_u32 v{Ta}, v{L}, 3, 1", f"v_lshl_add_u32 v{V_SO}, v{Ta}, 10, v{V_SO}", f"v_add_u32 v{V_SO}, s5, v{V_SO}",
        f"s_lshl_b32 s5, s{S_W}, 7", f"s_lshl_b32 s6, s{S_H}, 2", "s_add_u32 s5, s5, s6", f"v_mov_b32 v{V_FO}, s5",
        f"s_lshr_b32 s5, s{S_H}, 2", "s_lshl_b32 s5, s5, 7", f"v_and_b32 v{V_VF}, 15, v{L}", f"v_lshlrev_b32 v{V_VF}, 2, v{V_VF}", f"v_add_u32 v{V_VF}, s5, v{V_VF}",
        f"s_mul_i32 s5, s4, {16*WGS}"] + srd(S_RD, 90, "s5", 16*WGS) + [
        f"s_mov_b32 s{S_OUT}, s96", f"s_mov_b32 s{S_OUT+1}, s97", f"s_mov_b32 s{S_OUT+2}, 1835008", f"s_mov_b32 s{S_OUT+3}, 0x20000",
        f"s_mov_b32 s3, {cfg.spin_max}"] + [f"v_mov_b32 v{V_L+i}, 0" for i in range(4)]
    misc2 = [
        f"s_lshr_b32 s5, s{S_H}, 3\ns_lshl_b32 s5, s5, 14\ns_bfe_u32 s6, s{S_H}, 0x10002\ns_lshl_b32 s6, s6, 12\ns_add_u32 s5, s5, s6", f"s_and_b32 s6, s{S_H}, 3", "s_lshl_b32 s6, s6, 10", "s_add_u32 s5, s5, s6",
        f"s_lshl_b32 s6, s{S_W}, 8", "s_add_u32 s5, s5, s6", f"s_mov_b32 s6, {WGS}",
        f"v_mul_lo_u32 v{V_VR}, v{G}, s6", f"v_lshl_add_u32 v{V_VR}, v{Ta}, 7, v{V_VR}", f"v_and_b32 v{Tb}, 7, v{L}",
        f"v_lshl_add_u32 v{V_VR}, v{Tb}, 4, v{V_VR}", f"v_add_u32 v{V_VR}, s5, v{V_VR}",
        f"s_lshl_b32 s5, s{S_B}, 7", f"s_lshl_b32 s6, s{S_H}, 3", "s_add_u32 s5, s5, s6", "s_mul_i32 s5, s5, 1792",
        f"s_mul_i32 s6, s{S_P}, 896", "s_add_u32 s5, s5, s6", f"s_lshr_b32 s6, s{S_W}, 1", "s_lshl_b32 s6, s6, 6", "s_add_u32 s5, s5, s6",
        f"s_and_b32 s6, s{S_W}, 1", "s_lshl_b32 s6, s6, 4", "s_add_u32 s5, s5, s6",
        f"v_mul_u32_u24 v{V_VO}, 1792, v{Tb}", f"v_lshl_add_u32 v{V_VO}, v{Ta}, 3, v{V_VO}", f"v_and_b32 v{Ta}, 1, v{G}",
        f"v_lshl_add_u32 v{V_VO}, v{Ta}, 5, v{V_VO}", f"v_add_u32 v{V_VO}, s5, v{V_VO}"]
    for tl in range(1, 16):
        base = qend + 16*tl
        if cfg.swin:
            window(maxcode(tl-1), base + 2, base + (17 if tl < 15 else 13))
            if 1 <= tl <= 5:
                n1 = len(misc1); window(misc1[(tl-1)*n1//5:tl*n1//5], base + 2, base + 17)
            if tl == 13: window(misc2[:13], base + 2, base + 17)
            if tl == 14: window(misc2[13:], base + 2, base + 17)
        else:
            forced(maxcode(tl-1), base + 2, 12)
            if tl == 1: forced(misc1[:22], base + 14, 2)
            if tl == 2: forced(misc1[22:], base + 14, 2)
            if tl == 14: forced(misc2, base + 14, 2)
        if tl == 3 and cfg.pool: items[base + 14]['ldsw'] = True
        if tl == 5 and cfg.pool: items[base + 14]['ldsr'] = base + 16 + 10
        if tl == 6:
            pol = []
            if cfg.pool: pol += ["v_add_u32 v252, v252, v253", "v_add3_u32 v252, v252, v254, v255", f"v_readfirstlane_b32 s{RB+3}, v252"]
            pol += [(f"s_lshl_b32 s6, s{RB+3}, 1\ns_and_b32 s{RB+2}, s{S_W}, 1\ns_sub_u32 s6, s6, s{RB+2}\ns_lshr_b32 s{RB+2}, s6, 31" if cfg.force is None else
                     f"s_lshr_b32 s6, s{S_H}, 3\ns_xor_b32 s6, s6, s{S_P}\ns_xor_b32 s{RB+2}, s6, {cfg.force}"),
                    f"s_lshl_b32 s{RB+2}, s{RB+2}, 13", f"v_add_u32 v{V_SO}, s{RB+2}, v{V_SO}"]
            if cfg.swin: window(pol, base + 12, base + 17)
            else: forced(pol, base + 14, 2)
    send = len(items)
    def softmax(tl):
        pb = V_QA + 8*(tl % 2); tb = V_QA + 16
        e = []
        for i in range(16):
            u = i // 8
            e.append((i + 0, 0, f"v_accvgpr_read_b32 v{tb+i}, a{16*tl+i}"))
            e.append((i + 1, 1, f"v_fma_f32 v{tb+i}, v{tb+i}, s{S_C}, -v{V_MC+u}"))
            e.append((i + 2, 2, f"v_exp_f32 v{tb+i}, v{tb+i}"))
            if not cfg.ones: e.append((i + 4, 3, f"v_add_f32 v{V_L+2*u+i%2}, v{V_L+2*u+i%2}, v{tb+i}"))
            if i % 2 == 1: e.append((i + 4, 4, f"v_cvt_pk_bf16_f32 v{pb+i//2}, v{tb+i-1}, v{tb+i}"))
        e.sort(key=lambda x: (x[0], -x[1]))
        return [x[2] for x in e]
    def xreduce(r0, r1, op):
        a, b = V_T2, V_T2 + 1
        o = []
        for sw in ("v_permlane32_swap_b32", "v_permlane16_swap_b32"):
            o += [f"v_mov_b32 v{a}, v{r0}", f"v_mov_b32 v{b}, v{r1}", f"{sw} v{a}, v{r0}", f"{sw} v{b}, v{r1}",
                  f"{op} v{r0}, v{r0}, v{a}", f"{op} v{r1}, v{r1}, v{b}"]
        return o
    if cfg.ones: forced([f"v_mov_b32 v{V_ONE+i}, 0x3f803f80" for i in range(4)], send - 2, 2)
    pvbase = []
    pre = maxcode(15) + xreduce(V_M, V_M+1, "v_max_f32") + [f"v_mul_f32 v{V_MC+u}, s{S_C}, v{V_M+u}" for u in range(2)] + softmax(0)
    for tl in range(16):
        base = len(items)
        pvbase.append(base)
        pb = V_QA + 8*(tl % 2)
        Bp = [R('v', pb, 4), R('v', pb+4, 4)]
        if cfg.ones: item(('v', tl), [], Bp, [R('v', V_SUM, 4), R('v', V_SUM+4, 4)], tl == 0, A=R('v', V_ONE, 4))
        for mt in range(16):
            rel = (mt//4)*4096
            item(('v', tl), [('T', mt % 4, rel), ('T', mt % 4, rel + 2048)], Bp, acc('v', V_X, mt), tl == 0)
        if tl == 0: items[base]['pre'] = pre
        if tl == 8: items[base+2]['mem'] = [f"v_mov_b32 v{V_RDY}, 0", f"buffer_load_dword v{V_RDY}, v{V_RDY}, s[{S_DB}:{S_DB+3}], 0 offen"]
        if tl == cfg.code_pf2:
            items[base+5]['mem'] = [f"s_lshl_b32 s5, s{S_W}, 12", f"s_add_u32 s5, s5, CODE_END_OFF - 16384", f"v_lshlrev_b32 v{V_T2+2}, 6, v{L}",
                                    f"v_add_u32 v{V_T2+2}, s5, v{V_T2+2}", f"global_load_dword v{V_T2+2}, v{V_T2+2}, s[92:93]"]
        if tl < 15: forced(softmax(tl+1), base, len(items) - base)
    pvend = len(items)
    outbase = pvend
    if cfg.ones: fin = [f"v_rcp_f32 v{V_L+1}, v{V_SUM}", f"v_rcp_f32 v{V_L+3}, v{V_SUM+4}"]
    else: fin = [f"v_add_f32 v{V_L}, v{V_L}, v{V_L+1}", f"v_add_f32 v{V_L+2}, v{V_L+2}, v{V_L+3}"] + xreduce(V_L, V_L+2, "v_add_f32") + \
          [f"v_rcp_f32 v{V_L+1}, v{V_L}", f"v_rcp_f32 v{V_L+3}, v{V_L+2}"]
    window(fin, pvend - 15, pvend + 20)
    for a in range(8): window(pack(a), pvend - 16 + 2*a + 3, outbase + 4*a - 1)
    user = {}
    for j in range(7):
        ab = V_QA if j % 2 == 0 else V_T2
        if j >= 1: seq = [(a, 2*b + t) for b in range(2) for a in range(8) for t in range(2)]
        else: seq = [(a, nt) for a in range(8) for nt in range(4)]
        for a, nt in seq:
            rel = (a % 4)*4096
            if j < 2:
                fi = 16*(2*j + a//4) + 4*(a % 4) + nt
                item(('v', 15), [], frag(V_X, a), acc('v', ab, nt), a == 0, A=R('a', 4*fi, 4))
                user[fi] = len(items) - 1
            else:
                item(('wo', 2*j + a//4), [('T', nt, rel), ('T', nt, rel + 2048)], frag(V_X, a), acc('v', ab, nt), a == 0)
    for tl in range(16):
        for n_ in range(8):
            fi = 4*tl + n_//2
            items[pvbase[tl] + 1 + 2*n_].setdefault('pr', []).append((fi, n_ % 2))
    for k_, t_ in enumerate(cfg.pf3):
        while items[t_]['mem']: t_ += 1
        items[t_]['mem'] = [f"L_pf{k_}:", f"s_lshl_b32 s7, s{S_W}, 12", f"s_add_u32 s7, s7, L_pf{k_} - {KNAME} + 1024", f"v_lshlrev_b32 v{V_RDY}, 6, v{L}",
                            f"v_add_u32 v{V_RDY}, s7, v{V_RDY}", f"global_load_dword v{V_RDY}, v{V_RDY}, s[92:93]"]
    N = len(items)
    def sdst(j, q): return V_X + 8*((4*j + q) % 16) + 4
    def cvts(j, q):
        b = (V_QA if j % 2 == 0 else V_T2) + 8*q
        d = sdst(j, q)
        o = []
        for i in range(4):
            o += [f"v_mul_f32 v{b+2*i}, v{b+2*i}, v{V_L+1+2*(q % 2)}", f"v_mul_f32 v{b+2*i+1}, v{b+2*i+1}, v{V_L+1+2*(q % 2)}",
                  f"v_cvt_pk_bf16_f32 v{d+i}, v{b+2*i}, v{b+2*i+1}"]
        return o
    lasts = []
    for c in cfg.groups: lasts.append((lasts[-1] if lasts else -1) + c)
    sched = []
    pos = cfg.st_start
    tS = {}
    sq = [(j, q) for j in range(7) for q in range(4)][:-2]
    tail = []
    busy = set()
    vt = 0
    for (j, q) in sq:
        rel = 34 if j == 0 else 32*j + 16*(q//2 + 1) + 2
        vt = max(vt, rel) + cfg.cw
        pos = max(pos, vt)
        while pos % 32 == 25: pos += 1
        dl = min(pos - 1, 32*(j+2) + 16*(q//2) - 1, 223)
        window(cvts(j, q), outbase + rel, outbase + dl)
        tS[(j, q)] = pos
        if (4*j + q) >= 16: assert tS[((4*j+q-16)//4, q)] < rel
        if pos < 224: items[outbase + pos]['ops'].append(('S', j, q))
        else: tail.append(('S', j, q))
        pos += cfg.st_gap
    tail += [('X', 6, 2), ('X', 6, 3)]
    for j in lasts[:-1]:
        t_ = tS[(j, 3)] + cfg.t_flag
        while t_ < 224 and (t_ % 32 == 25 or items[outbase + t_]['ops']): t_ += 1
        if t_ < 224: items[outbase + t_]['ops'].append(('F', j))
        else: tail.append(('F', j))
    npoll = {lasts[0]: 1}
    j0 = 0
    rest = lasts
    if cfg.instream:
        tp, tc, gp = cfg.instream
        def put(t_, op):
            while t_ % 32 == 25 or items[outbase + t_]['ops']: t_ += 1
            items[outbase + t_]['ops'].append(op); return t_
        put(tp, ('P', lasts[0], 0)); t_ = put(tc, ('C', lasts[0]))
        for j in range(lasts[0] + 1):
            for i in range(4): t_ = put(t_ + gp, ('L', j, i))
        j0 = lasts[0] + 1; rest = lasts[1:]; npoll[rest[0]] = 1
    if len(rest) == 1: tail += [('F', 6), ('P', 6, 0)]
    elif cfg.early_a is None: tail += [('P', rest[0], 0), ('F', 6)]
    else: items[outbase + cfg.t_pa]['ops'].append(('P', rest[0], 0))
    for k, j1 in enumerate(rest):
        ld = [('L', j, i) for j in range(j0, j1 + 1) for i in range(4)]
        tail.append(('C', j1))
        if k + 1 < len(rest):
            ks = sorted({min(len(ld), x) for x in cfg.keeps}, reverse=True)
            npoll[rest[k+1]] = len(ks)
            for n_, op in enumerate(ld + [None]):
                if k == 0 and cfg.early_a is not None and n_ == cfg.early_a: tail.append(('F', 6))
                if len(ld) - n_ in ks: tail.append(('P', rest[k+1], ks.index(len(ld) - n_)))
                if op: tail.append(op)
        else: tail += ld
        j0 = j1 + 1

    def vwait(tag):
        idx = vm.index(tag)
        P(f"s_waitcnt vmcnt({min(63, len(vm)-1-idx)})")
    def emit_op(op):
        k = op[0]; j = op[1]
        if k in 'SX':
            q = op[2]
            if k == 'X':
                for x in cvts(j, q): P(x)
            if q == 0: P(f"s_lshl_b32 s{S_T}, s{ROT+j}, {PSH}")
            b = sdst(j, q)
            P(f"buffer_store_dwordx4 v[{b}:{b+3}], v{V_SO}, s[{S_WS}:{S_WS+3}], s{S_T} offen offset:{(q % 2)*2048 + (q//2)*512}{fl(cfg.st_flag)}")
            vm.append(('S', j, q))
        elif k == 'F':
            if j == lasts[0]:
                P("L_rdy:")
                P(f"v_cmp_eq_u32 vcc, 1, v{V_RDY}")
                P("s_cbranch_vccnz L_rdy_ok")
                P.slow(True)
                P(f"v_mov_b32 v{V_RDY}, 0")
                P(f"buffer_load_dword v{V_RDY}, v{V_RDY}, s[{S_DB}:{S_DB+3}], 0 offen sc0 sc1")
                P("s_waitcnt vmcnt(0)")
                P("s_sub_u32 s3, s3, 1\ns_cmp_gt_i32 s3, 0\ns_cbranch_scc1 L_rdy")
                P.slow(False)
                P("L_rdy_ok:")
            P(f"s_add_u32 s6, s{RB+2}, {j+1}\nv_mov_b32 v{V_FV}, s6")
            vwait(('S', j, 3))
            if j == 6: stamp()
            P("s_mov_b64 exec, 1")
            P(f"buffer_store_dword v{V_FV}, v{V_FO}, s[{S_FL}:{S_FL+3}], 0 offen sc0 sc1")
            P("s_mov_b64 exec, -1")
            vm.append(op)
        elif k == 'P':
            pv = V_PV if op[2] == npoll[j] - 1 else V_OV + op[2]
            P(f"buffer_load_dword v{pv}, v{V_VF}, s[{S_FL}:{S_FL+3}], 0 offen sc0 sc1")
            vm.append(op)
        elif k == 'C':
            for r_ in range(npoll[j] - 1):
                vwait(('P', j, r_))
                P(f"v_and_b32 v{V_M}, 15, v{V_OV + r_}")
                P(f"v_cmp_gt_u32 vcc, {j+1}, v{V_M}")
                P(f"s_cbranch_vccz L_ok{j}")
                P.slow(True)
            vwait(('P', j, npoll[j] - 1))
            P(f"L_chk{j}:")
            P(f"v_and_b32 v{V_M}, 15, v{V_PV}")
            P(f"v_cmp_gt_u32 vcc, {j+1}, v{V_M}")
            P(f"s_cbranch_vccz L_ok{j}")
            P.slow(True)
            P(f"buffer_load_dword v{V_PV}, v{V_VF}, s[{S_FL}:{S_FL+3}], 0 offen sc0 sc1")
            P("s_waitcnt vmcnt(0)")
            P(f"s_sub_u32 s3, s3, 1\ns_cmp_gt_i32 s3, 0\ns_cbranch_scc1 L_chk{j}")
            P.slow(False)
            P(f"L_ok{j}:")
            if j == lasts[0]:
                P(f"v_cmp_lt_u32 vcc, 15, v{V_PV}")
                P(f"v_mbcnt_lo_u32_b32 v{V_M+1}, -1, 0\nv_mbcnt_hi_u32_b32 v{V_M+1}, -1, v{V_M+1}\nv_lshrrev_b32 v{V_M+1}, 4, v{V_M+1}")
                P(f"v_lshrrev_b32 v{V_M+1}, v{V_M+1}, vcc_lo")
                for i in range(4):
                    P(f"v_bfe_u32 v{V_AK+i}, v{V_M+1}, {4*i}, 1")
                    P(f"v_lshl_add_u32 v{V_AK+i}, v{V_AK+i}, 13, v{V_VR}")
            if j == 6: stamp()
        elif k == 'L':
            i = op[2]; n = 4*j + i
            if i == 0: P(f"s_lshl_b32 s{S_T+1}, s{ROT+j}, {PSH}")
            else: P(f"s_add_u32 s{S_T+1}, s{S_T+1}, {4*WGS}")
            P(f"buffer_load_dwordx4 a[{4*n}:{4*n+3}], v{V_AK+i}, s[{S_RD}:{S_RD+3}], s{S_T+1} offen{fl(cfg.ld_flag)}")
            vm.append(op)
    nb = 0
    for it in items:
        if it['reads']: it['buf'] = V_A + 4*(nb % 8); nb += 1
    rd_items = [i for i, it in enumerate(items) if it['reads']]
    issue_at = {}
    for k, j_ in enumerate(rd_items):
        if k >= cfg.pd:
            i_ = max(rd_items[k - cfg.pd], j_ - cfg.pd - 1)
            assert i_ not in issue_at
            issue_at[i_] = j_
    areg = {'K': V_AK, 'T': V_AT, 'X': V_AX, 'U': V_AK}
    regbase = {}
    def lds_off(kind, idx, sb, rel):
        r = areg[kind] + idx
        off = sb + rel - regbase.get(r, 0)
        if off < 0 or off > 65535:
            nbse = (sb // 65536) * 65536
            P(f"v_add_u32 v{r}, {(nbse - regbase.get(r, 0)) & 0xffffffff}, v{r}")
            regbase[r] = nbse; off = sb + rel - nbse
            late[0] += 1
        return r, off
    late = [0]
    baseA = []
    def issue_reads(i):
        it = items[i]
        sb = slot_of[it['stage']] * 16384
        for k, (kind, idx, rel) in enumerate(it['reads']):
            r, off = lds_off(kind, idx, sb, rel)
            ab = it['buf']
            P(f"{'ds_read_b64' if kind == 'K' else 'ds_read_b64_tr_b16'} v[{ab+2*k}:{ab+2*k+1}], v{r} offset:{off}")
            lds.append(i)
    def early_rebase(i):
        o = []
        for (kind, idx) in {(k_, x_) for k_, x_, _ in items[i]['reads']}:
            r = areg[kind] + idx
            nxt = next((j for j in rd_items if j > i and any(k_ == kind and x_ == idx for k_, x_, _ in items[j]['reads'])), None)
            if nxt is None or items[nxt]['stage'] not in slot_of or nxt - i > 40: continue
            sb = slot_of[items[nxt]['stage']] * 16384
            if not (0 <= sb - regbase.get(r, 0) <= 65536 - 16384):
                nbse = (sb // 65536) * 65536
                o.append(f"v_add_u32 v{r}, {(nbse - regbase.get(r, 0)) & 0xffffffff}, v{r}")
                regbase[r] = nbse
        return o
    published = [-1]
    poolslot = [None]; poolback = [None]
    lead = [None]
    pend = []
    xq = []
    def publish(e, i):
        nonlocal pend
        for x in pend: emit_dma(x)
        if events[e]:
            idx = max(k for k, tg in enumerate(vm) if tg in events[e])
            for s in events[e]: assert vm.count(s) == 4, (e, s)
            if events[e][0] in wpos:
                n_ = len(lds) - 1 - wpos[events[e][0]]
                if wpos[events[e][0]] > ldone[0]: P(f"s_waitcnt lgkmcnt({min(15, n_)})")
            else: P(f"s_waitcnt vmcnt({min(63, len(vm)-1-idx)})")
            waited[0] = max(waited[0], idx)
            if idx >= zero_mark and lead[0] is None: lead[0] = i + 3
        elif e == 47:
            assert ldone[0] == len(lds) - 1
        P("s_barrier")
        if cfg.stamps and e in cfg.stamp_events: stamp()
        published[0] = e
        if e >= 2:
            for s in events[e-2]:
                if not (s[0] == 'wo' and s[1] < 4): free.append(slot_of[s])
            if e >= 35 and (e - 35) % 4 == 0 and (e - 35)//4 < 4: free.append(slot_of[('wo', (e - 35)//4)])
        if e == poolback[0]: free.append(poolslot[0])
        pend = next_stages(e, cfg.maxn if e < 47 else 10)
        if events[e] and events[e][0][0] == 'x':
            j = events[e][0][1]
            for s2 in range(2):
                for u in range(2): xq.append((j, s2, u))
    def xread():
        j, s2, u = xq.pop(0)
        r, off = lds_off('X', s2, slot_of[('x', j)]*16384, 2048*u)
        b = V_QA + 16*(j % 2) + 8*s2 + 4*u
        P(f"ds_read_b128 v[{b}:{b+3}], v{r} offset:{off}")
        lds.append(16*(2*j + s2))
        if u == 1 and ('x', j+1) in slot_of:
            sb = slot_of[('x', j+1)]*16384
            if not (0 <= sb - regbase.get(r, 0) <= 65536 - 16384):
                nbse = (sb // 65536) * 65536
                d = (nbse - regbase.get(r, 0)) & 0xffffffff
                regbase[r] = nbse
                return [f"v_add_u32 v{r}, {d}, v{r}"]
        return []
    def wait_for(i):
        assert not any(16*(2*j + s2) <= i for j, s2, u in xq)
        last = max(k for k, tg in enumerate(lds) if tg <= i)
        ldone[0] = max(ldone[0], last)
        P(f"s_waitcnt lgkmcnt({min(15, len(lds)-1-last)})")
    publish(0, -1)
    while xq:
        for x in xread(): P(x)
    for k in range(cfg.pd): issue_reads(rd_items[k])
    wait_for(0)
    pub_at = {}
    for i in range(N):
        t_ = issue_at.get(i)
        if t_ is not None and items[t_]['ev'] not in pub_at: pub_at[items[t_]['ev']] = i - 1
    pub_at[46] = pvend - 7; pub_at[47] = outbase + 2
    pub_item = {v: k for k, v in pub_at.items() if k > 0}
    since = 99
    over = 0
    for i, it in enumerate(items):
        if i == send:
            for q_ in range(4):
                P(f"v_mov_b32 v{V_AK+q_}, v{V_AT+q_}"); regbase[V_AK+q_] = regbase.get(V_AT+q_, 0)
        for x in it['pre']: P(x)
        A = it['A'] or f"v[{it['buf']}:{it['buf']+3}]"
        def mf(u): P(f"v_mfma_f32_16x16x32_bf16 {it['D'][u]}, {A}, {it['B'][u]}, {'0' if it['first'] else it['D'][u]}")
        mf(0)
        if i + 1 < N and (items[i+1]['reads'] or max(k for k, tg in enumerate(lds) if tg <= i + 1) > ldone[0]): wait_for(i + 1)
        must = []
        if i in issue_at:
            issue_reads(issue_at[i])
            must = early_rebase(issue_at[i])
        if i not in issue_at:
            for _ in range(2):
                if fifo and fifo[0][0] <= i and cost(fifo[0][2]) == 1: P(fifo.pop(0)[2])
        mf(1)
        if cfg.extra and i < cfg.extra_end and i % 16 in (1, 5, 11, 14)[:cfg.extra]:
            for u in range(2): P(f"v_mfma_f32_16x16x32_bf16 a[{4+4*u}:{7+4*u}], {A}, {it['B'][u]}, 0")
        if cfg.sextra and qend <= i < qend + 16*15 and (i % 16) * cfg.sextra // 16 != ((i % 16) + 1) * cfg.sextra // 16:
            P(f"v_mfma_f32_16x16x32_bf16 a[240:243], {A}, {it['B'][0]}, 0")
            P(f"ds_read_b64 v[128:129], v{V_AK} offset:0\nds_read_b64 v[130:131], v{V_AK+1} offset:2048"); lds.extend([10**6, 10**6])
            P(f"v_mfma_f32_16x16x32_bf16 a[244:247], {A}, {it['B'][1]}, 0")
        room = cfg.pvroom if pvend - 17 <= i < pvend else 2
        for x in it.get('race', []): P(x)
        for (fi, hf) in it.get('pr', []):
            r, off = lds_off('U', fi % 4, slot_of[('wo', fi//16)]*16384, ((fi % 16)//4)*4096 + 2048*hf)
            P(f"ds_read_b64_tr_b16 a[{4*fi+2*hf}:{4*fi+2*hf+1}], v{r} offset:{off}")
            lds.append(min(user[fi], outbase + 1))
        shadow = True
        since += 1
        if i in pub_item:
            publish(pub_item[i], i); shadow = False; room -= 1
            if xq: must += xread(); room -= 1
        elif i == lead[0]:
            P(f"s_cmp_lg_u32 s{S_LEAD}, 0\ns_cbranch_scc1 L_nl")
            P.slow(True)
            P("v_mov_b32 v249, 1\ns_mov_b64 exec, 1")
            P(f"buffer_store_dword v249, v248, s[{S_DB}:{S_DB+3}], 0 offen sc0 sc1")
            P("s_mov_b64 exec, -1")
            P.slow(False)
            P("L_nl:")
            shadow = False; room -= 1
        else:
            nxtpub = min([x for x in pub_item if x > i], default=N)
            nd = sum(1 for x in pend if x[0] == 'D')
            urgent = len(pend) >= nxtpub - i
            if xq:
                if pend and pend[0][0] == 'S': emit_dma(pend.pop(0))
                must += xread(); room -= 1; shadow = False
            elif pend and pend[0][0] in 'SV':
                emit_dma(pend.pop(0)); shadow = False
                if (urgent or qend - 40 <= i < outbase) and pend[0][0] == 'S': emit_dma(pend.pop(0)); room -= 1
                if urgent and len(pend) >= nxtpub - i: emit_dma(pend.pop(0)); room -= 2; since = 0
            elif pend and not it['ops'] and not it['mem'] and (urgent or (not must and since >= min((cfg.dma_gap if i < qend - 40 else cfg.out_gap if i >= outbase else cfg.kv_gap), max(1, (nxtpub - i) // len(pend))))):
                emit_dma(pend.pop(0)); room -= 2; since = 0; shadow = False
        if it.get('ldsw'):
            poolslot[0] = free.pop()
            P(f"s_lshl_b32 s7, s{S_W}, 2\ns_add_u32 s7, s7, {poolslot[0]*16384}\nv_mov_b32 v250, s7\nv_mov_b32 v251, s{RB+3}")
            P("ds_write_b32 v250, v251"); lds.append(i + 8)
        if it.get('ldsr'):
            P(f"v_mov_b32 v250, {poolslot[0]*16384}")
            P("ds_read_b128 v[252:255], v250"); lds.append(it['ldsr'])
            poolback[0] = published[0] + 3
        for x in it['mem']:
            tag = ('m', 0)
            if isinstance(x, tuple): x, tag = x
            P(x); room -= 1
            if x.startswith(('buffer', 'global')): vm.append(tag)
        for op in it['ops']: emit_op(op); shadow = False
        for x in must: P(x); room -= 1; shadow = False
        while fifo and fifo[0][0] <= i:
            c = cost(fifo[0][2])
            c = (0 if shadow else 1) if c == 'S' else c
            need = any(f[1] <= i for f in fifo[:80])
            if not need:
                accu = 0
                for f in fifo[:120]:
                    if f[0] > i + 4 or f[0] == f[1]: break
                    cc = cost(f[2]); accu += 1 if cc == 'S' else cc
                    if accu > 2*(f[1] - i): need = True; break
            if c <= room or need:
                P(fifo.pop(0)[2]); room -= c; shadow = False
            else: break
        if room < 0 and (i < qend or i >= outbase): over += -room
    assert not fifo and not pend
    stamp()
    A1 = 0
    DS = [8*j + 8 for j in range(7)]
    def selector():
        P("v_mbcnt_lo_u32_b32 v64, -1, 0\nv_mbcnt_hi_u32_b32 v64, -1, v64")
        P("v_and_b32 v65, 1, v64\nv_lshlrev_b32 v65, 4, v65\nv_mov_b32 v66, 0x3f80\nv_lshlrev_b32 v66, v65, v66\nv_bfe_u32 v65, v64, 1, 3")
        for k in range(4):
            P(f"v_cmp_eq_u32 vcc, {k}, v65")
            P(f"v_cndmask_b32 v{A1+k}, 0, v66, vcc")
    for op in tail:
        emit_op(op)
        if op == ('X', 6, 3): selector()
    def finp(j):
        P(f"v_cvt_pk_bf16_f32 v{DS[j]}, v{DS[j]}, v{DS[j]+1}")
        P(f"v_cvt_pk_bf16_f32 v{DS[j]+1}, v{DS[j]+2}, v{DS[j]+3}")
        P("s_mov_b32 exec_hi, 0")
        P(f"buffer_store_dwordx2 v[{DS[j]}:{DS[j]+1}], v{V_VO}, s[{S_OUT}:{S_OUT+3}], s{ROT+j} offen{fl(cfg.out_flag)}")
        vm.append(('O', j))
        P("s_mov_b32 exec_hi, -1")
    for j in range(7):
        d = R('v', DS[j], 4)
        for i in range(4):
            n = 4*j + i
            vwait(('L', j, i))
            P(f"v_mfma_f32_16x16x32_bf16 {d}, v[{A1}:{A1+3}], a[{4*n}:{4*n+3}], {'0' if i == 0 else d}")
        if j >= 1: finp(j - 1)
    finp(6)
    if cfg.stamps:
        P("s_waitcnt vmcnt(0)")
        stamp()
        P("s_waitcnt lgkmcnt(0)")
        P(f"s_add_u32 s{S_T}, s90, 0x7000000\ns_addc_u32 s{S_T+1}, s91, 0\ns_mov_b32 s{S_T+2}, 0x100000\ns_mov_b32 s{S_T+3}, 0x20000")
        P(f"s_lshl_b32 s5, s2, 10\ns_lshl_b32 s6, s{S_W}, 8\ns_add_u32 s5, s5, s6")
        P("v_mov_b32 v1, s5")
        for k in range(nst[0]):
            P(f"v_mov_b32 v2, s{S_ST+2*k}\nv_mov_b32 v3, s{S_ST+2*k+1}")
            P(f"buffer_store_dwordx2 v[2:3], v1, s[{S_T}:{S_T+3}], 0 offen offset:{8*k}")
            P("s_nop 2")
        P(f"v_mov_b32 v2, s{RB+3}\nv_mov_b32 v3, 0\nbuffer_store_dwordx2 v[2:3], v1, s[{S_T}:{S_T+3}], 0 offen offset:248")
        P("s_waitcnt vmcnt(0)")
    P("L_end:")
    P("s_endpgm")
    for _ in range(cfg.pad): P("s_nop 0")
    P.info = dict(late=late[0], over=over)
    return P, nst[0]

def gen(cfg):
    main, nst = gen_main(cfg)
    s = HEADER
    s += f"; @launch grid=(256,1,1) block=(256,1,1) lds={cfg.nslots*16384}\n"
    s += '.amdgcn_target "amdgcn-amd-amdhsa--gfx950"\n.text\n'
    s += f".set CODE_END_OFF, L_end - {KNAME}\n"
    s += f".globl {KNAME}\n.p2align 8\n.type {KNAME},@function\n" + main.text()
    s += kd(KNAME, 512, 102, 256)
    Ls = s.split('\n')
    lastk = max(i for i, l in enumerate(Ls) if 's[8:11]' in l and 'buffer_load' in l)
    assert lastk < min(i for i, l in enumerate(Ls) if 'v_mul_lo_u32 v200' in l), "K voffsets overwritten too early"
    lastq = max(i for i, l in enumerate(Ls) if ' lds' in l and ('s[16:19]' in l or 's[24:27]' in l))
    assert lastq < min(i for i, l in enumerate(Ls) if 'v_lshlrev_b32 v192, 4' in l)
    return s, (main.nops, main.info)

if __name__ == "__main__":
    s, nops = gen(Cfg())
    open('g11.s', 'w').write(s)
    print("nops/info", nops, "lines", s.count('\n'))
```

```python
import sys, struct
sys.path.insert(0, 'gen')
from asmdsl import Prog, R
from gen1 import KNAME, HEADER, f32hex, kd

class Cfg:
    nslots = 10
    pd = 6
    kv_flag = "nt"
    w_flag = ""
    wo_flag = ""
    x_flag = ""
    st_flag = "sc0 sc1"
    ld_flag = "sc0 sc1"
    out_flag = ""
    stamps = False
    stamp_op = "s_memrealtime"
    stamp_events = ()
    code_pf2 = None
    no_dma = False
    dma_gap = 3
    kv_gap = 2
    ahead = 2
    ahead0 = 3
    ramp_ev = 14
    q_ahead = 3
    wo_ahead = 99
    wo_free = 46
    npro = 5
    pro_split = 2
    spin_max = 200000
    st_start = 40
    st_gap = 6
    t_flag = 40
    groups = (4, 3)
    keeps = (6,)
    early_a = None
    t_pa = 209
    ones = True
    lastsplit = True
    maxn = 3
    qwarm = ()
    koff = 768
    anchor = 12
    warm = (12, 13, 14)
    hooklines = 1
    align = 0
    k128 = False
    prenorm = True
    kmerge = 1
    freecap = 3
    q_sched = ()
    xfree = False
    pf3 = (240, 440, 590, 690)
    pad = 0
    pf0 = 16
    pf_off = 3072
    out_gap = 1
    wo_req = (27, 31, 35, 39, 43, 43, 44, 44, 44, 45, 45, 46, 47, 47)
    w64 = True
    instream = None
    swin = True
    kst = {4: 58, 9: 86, 14: 138}
    kst_gap = 2
    wopf = (18, 20, 22, 24, 26, 28, 30)
    sextra = 0
    extra = 0
    extra_end = 176
    kreq = ()
    cw = 2
    pvroom = 3
    boost = ()
    pool = True
    wo_early = ()
    probe_at = 20
    race_beg = 4
    races = (86, 118)
    race_len = 22
    dump_score = False
    force = None
    iod = None
    rot = 3
    def __init__(self, **kw):
        for k, v in kw.items(): setattr(self, k, v)

PART = 114688
FLAG_OFF = 0x2000000
S_K, S_V, S_WQ, S_WO, S_X, S_WS = 8, 12, 16, 20, 24, 28
S_P, S_B, S_H, S_W = 32, 33, 34, 35
S_LW4K, S_LEAD, S_OFF, S_C = 36, 37, 38, 39
S_T = 40
S_FL = 44
S_ST = 48
S_DB = 76
S_ROT = 64
S_RD = S_X
S_OUT = S_WQ
V_X = 0
V_QA = 128
V_A = 160
V_OWQ, V_OX, V_OK, V_OV, V_OWO, V_AK, V_AT = 192, 196, 200, 204, 208, 212, 216
V_M, V_MC = 220, 222
V_T2 = 224
V_AX, V_G4, V_LANE = 240, 242, 243
V_SO, V_FO, V_RDY, V_VF = 192, 193, 194, 195
V_L = 196
V_VR, V_VO, V_PV, V_FV = 200, 201, 202, 203
V_KW = 222
V_ONE, V_SUM = 244, 248

def cost(x):
    op = x.split()[0]
    if op.startswith('s_'): return 'S'
    if op in ('v_exp_f32', 'v_rcp_f32'): return 2
    return 1

def gen_main(cfg):
    P = Prog()
    ROT = 80 if cfg.stamps else S_ROT
    LOC = True
    RB = 72 if not cfg.stamps else 72
    RA = [(56+2*k, 57+2*k) for k in range(4)] if not cfg.stamps else [(87, 88), (89, 101), (95, 100), (94, 7)]
    WGS = 262144 if LOC else PART
    PSH = 8 if LOC else 5
    FOFF = 0x6000000 if LOC else FLAG_OFF
    nst = [0]
    def stamp():
        if cfg.stamps:
            P(f"{cfg.stamp_op} s[{S_ST+2*nst[0]}:{S_ST+2*nst[0]+1}]")
            nst[0] += 1
    def fl(f): return (" " + f) if f else ""
    def srd(b, lo, off, size):
        return [f"s_add_u32 s{b}, s{lo}, {off}\ns_addc_u32 s{b+1}, s{lo+1}, 0", f"s_mov_b32 s{b+2}, {size}", f"s_mov_b32 s{b+3}, 0x20000"]
    P(f"{KNAME}:")
    stamp()
    P("s_cmp_ge_u32 s2, 256")
    P("s_cbranch_scc1 L_end")
    P("s_and_b32 s3, s2, 7")
    P(f"s_lshr_b32 s{S_P}, s3, 2")
    P(f"s_mul_i32 s5, s{S_P}, 40")
    P("s_add_u32 s6, s0, s5")
    P("s_addc_u32 s7, s1, 0")
    P("s_load_dwordx4 s[80:83], s[6:7], 0")
    P("s_load_dwordx4 s[84:87], s[6:7], 16")
    P("s_load_dwordx2 s[88:89], s[6:7], 32")
    P("s_load_dwordx2 s[90:91], s[0:1], 96")
    P("s_load_dwordx4 s[96:99], s[0:1], 80")
    P("s_lshr_b32 s4, s2, 3")
    P("s_and_b32 s5, s4, 3")
    P("s_and_b32 s6, s3, 3")
    P("s_lshl_b32 s6, s6, 2")
    P(f"s_add_u32 s{S_H}, s5, s6")
    P(f"s_lshr_b32 s{S_B}, s4, 2")
    vm = []
    P("s_getpc_b64 s[92:93]")
    P("s_and_b32 s92, s92, 0xffffff00")
    if cfg.pf0 == 'full':
        P("s_lshl_b32 s7, s5, 14")
        P("v_lshlrev_b32 v250, 6, v0")
        P("v_add_u32 v250, s7, v250")
        P("v_min_u32 v250, CODE_END_OFF - 64, v250")
        P("global_load_dword v251, v250, s[92:93]")
    else:
        P(f"s_and_b32 s7, s4, {cfg.pf0 - 1}\ns_lshl_b32 s7, s7, 12")
        P("v_lshrrev_b32 v250, 6, v0\nv_lshlrev_b32 v250, 10, v250\nv_and_b32 v251, 15, v0\nv_lshl_add_u32 v250, v251, 6, v250")
        P("v_add_u32 v250, s7, v250")
        P("v_min_u32 v250, CODE_END_OFF - 64, v250")
        P("s_mov_b64 exec, 0xffff\nglobal_load_dword v251, v250, s[92:93]\ns_mov_b64 exec, -1")
    vm.append(('pf', 0))
    RR, PC, SWP, W_, T0, T1, T2, SWK, T3 = range(V_T2, V_T2+9)
    L = V_LANE
    P(f"v_lshrrev_b32 v{W_}, 6, v0")
    P(f"v_and_b32 v{L}, 63, v0")
    P(f"v_readfirstlane_b32 s{S_W}, v{W_}")
    P(f"v_lshrrev_b32 v{RR}, 3, v{L}")
    P(f"v_and_b32 v{PC}, 7, v{L}")
    P(f"v_lshrrev_b32 v{T1}, 1, v{RR}")
    P(f"v_xor_b32 v{SWK}, v{PC}, v{T1}")
    P(f"v_lshlrev_b32 v{SWK}, 4, v{SWK}")
    P(f"s_lshl_b32 s{S_LW4K}, s{S_W}, 12")
    P(f"v_lshl_add_u32 v{T0}, v{W_}, 5, v{RR}")
    P(f"v_mul_u32_u24 v{T0}, 896, v{T0}")
    P(f"v_add_u32 v{T1}, v{T0}, v{SWK}")
    P(f"v_xor_b32 v{T2}, 64, v{T1}")
    for i in range(4): P(f"v_add_u32 v{V_OX+i}, {i*8*896 - 1024*i}, v{T1 if i % 2 == 0 else T2}")
    P(f"v_and_b32 v{T1}, 2, v{RR}")
    P(f"v_xor_b32 v{T1}, v{PC}, v{T1}")
    P(f"v_lshlrev_b32 v{T1}, 4, v{T1}")
    P(f"v_lshl_add_u32 v{T1}, v{W_}, 7, v{T1}")
    P(f"v_lshl_add_u32 v{T1}, v{RR}, 13, v{T1}")
    P(f"v_xor_b32 v{T2}, 64, v{T1}")
    for i in range(4): P(f"v_add_u32 v{V_OWQ+i}, {i*8*8192 - 1024*i}, v{T1 if i % 2 == 0 else T2}")
    P(f"s_mul_i32 s5, s{S_B}, 114688")
    P(f"s_lshl_b32 s6, s{S_H}, 9")
    P(f"s_mov_b32 s{S_X+2}, 114688\ns_mov_b32 s{S_X+3}, 0x20000")
    P(f"s_sub_u32 s{S_WQ+2}, 3670016, s6\ns_mov_b32 s{S_WQ+3}, 0x20000")
    if cfg.rot == 2: P(f"s_xor_b32 s7, s{S_H}, s{S_B}\ns_and_b32 s7, s7, 1\ns_lshl_b32 s7, s7, 2")
    if cfg.rot == 4: P(f"s_add_u32 s7, s{S_H}, s{S_B}\ns_and_b32 s7, s7, 3\ns_lshl_b32 s7, s7, 1")
    if cfg.rot == 3: P(f"s_add_u32 s7, s{S_H}, s{S_B}\ns_and_b32 s7, s7, 3\ns_lshl_b32 s7, s7, 2\ns_lshr_b32 s7, 0x5025, s7\ns_and_b32 s7, s7, 7")
    if cfg.rot == 7: P(f"s_and_b32 s7, s{S_H}, 3\ns_lshl_b32 s7, s7, 1\ns_add_u32 s7, s7, s{S_B}\ns_sub_u32 s94, s7, 7\ns_min_u32 s7, s7, s94")
    if cfg.rot == 23: P(f"s_xor_b32 s7, s{S_H}, s{S_B}\ns_and_b32 s7, s7, 1\ns_mul_i32 s7, s7, 3")
    if cfg.rot: P("s_lshl_b32 s94, s7, 7\ns_lshl_b32 s95, s7, 19")
    P("s_waitcnt lgkmcnt(0)")
    P(f"s_add_u32 s{S_X}, s80, s5\ns_addc_u32 s{S_X+1}, s81, 0")
    P(f"s_add_u32 s{S_WQ}, s86, s6\ns_addc_u32 s{S_WQ+1}, s87, 0")

    ST = {}
    for j in range(7): ST[('x', j)] = (S_X, V_OX, 128*j, cfg.x_flag)
    for s in range(14): ST[('wq', s)] = (S_WQ, V_OWQ, 32*s*8192, cfg.w_flag)
    for s in range(16): ST[('k', s)] = (S_K, V_OK, 32*s*512, cfg.kv_flag)
    for s in range(16): ST[('v', s)] = (S_V, V_OV, 32*s*512, cfg.kv_flag)
    for s in range(14): ST[('wo', s)] = (S_WO, V_OWO, None, cfg.wo_flag)
    events = []
    for s in range(14): events.append(([('x', s//2)] if s % 2 == 0 else []) + [('wq', s)])
    for s in range(16): events.append([('k', s)])
    for s in range(16): events.append(([('wo', s//4)] if s % 4 == 0 else []) + [('v', s)])
    events += [[], []]
    for j in range(2, 7): events.append([('wo', 2*j), ('wo', 2*j+1)])
    order = [s for e in events for s in e]
    for k, e_ in enumerate(cfg.kreq):
        tgt = next((s_ for s_ in order if s_[0] in ('x', 'wq') and [i_ for i_, l_ in enumerate(events) if s_ in l_][0] - cfg.q_ahead > e_), None)
        if tgt is not None:
            order.remove(('k', k)); order.insert(order.index(tgt), ('k', k))
    order = [s_ for s_ in order if s_[0] != 'wo']
    woq = sorted(range(14), key=lambda k_: cfg.wo_req[k_] if k_ < len(cfg.wo_req) else 100 + k_)
    slot_of = {}
    free = list(range(cfg.nslots))
    nload = [0]
    ev_of = {s: e for e, l in enumerate(events) for s in l}
    def next_stages(e, maxn):
        g = []; n = 0
        while free and n < maxn:
            s = order[nload[0]] if nload[0] < len(order) else None
            if s is not None:
                if s[0] == 'k' and s[1] < len(cfg.kreq):
                    if e < cfg.kreq[s[1]]: s = None
                elif s[0] in 'kv':
                    dist = sum(1 for e_ in range(e + 1, ev_of[s] + 1) if not (events[e_][-1][0] == 'k' and events[e_][-1][1] in cfg.kst))
                    if dist > (cfg.ahead0 if e < cfg.ramp_ev else cfg.ahead + (1 if e in cfg.boost else 0)): s = None
                elif e >= 0 and ev_of[s] - e > (cfg.q_sched[e] if e < len(cfg.q_sched) else cfg.q_ahead): s = None
            if s is not None: nload[0] += 1
            elif woq and e >= (cfg.wo_req[woq[0]] if woq[0] < len(cfg.wo_req) else 44) and (len(free) > 1 or nload[0] >= len(order)): s = ('wo', woq.pop(0))
            else: break
            n += 1
            slot_of[s] = free.pop(0)
            sr, vo, so, f = ST[s]
            if s[0] == 'k' and s[1] in cfg.kst:
                g.append(('V', f"v_add_u32 v{V_KW+1}, {slot_of[s]*16384}, v{V_KW}", s))
                if cfg.w64:
                    for i in range(8): g.append(('W', f"ds_write_b64 v{V_KW+1}, a[{16*s[1]+2*i}:{16*s[1]+2*i+1}] offset:{1024*(i//2) + 8*(i % 2)}", s))
                else:
                    for i in range(4): g.append(('W', f"ds_write_b128 v{V_KW+1}, a[{16*s[1]+4*i}:{16*s[1]+4*i+3}] offset:{1024*i}", s))
                continue
            g.append(('S', f"s_add_u32 m0, s{S_LW4K}, {slot_of[s]*16384}"))
            soff = f"s{S_OFF}"
            if s[0] == 'wo':
                if s[1] % 2 == 0: soff = f"s{ROT + s[1]//2}"
                else: g.append(('S', f"s_add_u32 s{S_OFF}, s{ROT + s[1]//2}, {128*896}"))
            elif cfg.rot and s[0] in ('x', 'wq'):
                rr, tot = (94, 7*128) if s[0] == 'x' else (95, 14*32*8192)
                if so == 0: soff = f"s{rr}"
                else:
                    g.append(('S', f"s_add_u32 s{S_OFF}, s{rr}, {so}"))
                    g.append(('S', f"s_sub_u32 s100, s{S_OFF}, {tot}"))
                    g.append(('S', f"s_min_u32 s{S_OFF}, s{S_OFF}, s100"))
            elif so == 0: soff = "0"
            else: g.append(('S', f"s_mov_b32 s{S_OFF}, {so}"))
            for i in range(4):
                g.append(('D', f"buffer_load_dwordx4 v{vo+i}, s[{sr}:{sr+3}], {soff} offen offset:{1024*i}{fl(f)} lds", s))
        return g
    def emit_dma(x):
        if x[0] == 'S': P(x[1])
        elif x[0] == 'V':
            idx = max(k for k, tg in enumerate(vm) if tg == x[2])
            if idx > waited[0]: P(f"s_waitcnt vmcnt({min(63, len(vm)-1-idx)})")
            P(x[1])
        elif x[0] == 'W':
            P(x[1]); lds.append(10**6); wpos[x[2]] = len(lds) - 1
        else:
            if not cfg.no_dma: P(x[1])
            vm.append(x[2])
    lds = []; wpos = {}; waited = [-1]; ldone = [-1]
    for x in next_stages(-1, cfg.pro_split): emit_dma(x)
    P(f"v_lshrrev_b32 v{T2}, 4, v{L}")
    P(f"v_and_b32 v{T3}, 15, v{L}")
    P(f"v_lshrrev_b32 v244, 1, v{T3}")
    P(f"v_xor_b32 v{T1}, v244, v{T2}")
    P(f"v_lshlrev_b32 v{T1}, 4, v{T1}")
    P(f"v_lshl_add_u32 v{T1}, v{T3}, 7, v{T1}")
    P(f"v_lshl_add_u32 v{V_AX}, v{W_}, 12, v{T1}")
    P(f"v_xor_b32 v{V_AX+1}, 64, v{V_AX}")
    P(f"v_lshrrev_b32 v{T1}, 1, v{T2}")
    P(f"v_xor_b32 v{T1}, v{T1}, v244")
    P(f"v_lshlrev_b32 v{T1}, 4, v{T1}")
    P(f"v_lshl_add_u32 v{T1}, v{T3}, 7, v{T1}")
    P(f"v_and_b32 v{T3}, 1, v{T2}")
    P(f"v_lshl_add_u32 v{V_AK}, v{T3}, 3, v{T1}")
    for j in range(1, 4): P(f"v_xor_b32 v{V_AK+j}, {32*j}, v{V_AK}")
    if cfg.k128:
        P(f"v_and_b32 v{V_AK}, 0xfff, v{V_AX}\nv_xor_b32 v{V_AK+1}, 64, v{V_AK}")
    P(f"v_bfe_u32 v244, v{L}, 2, 2")
    P(f"v_lshl_add_u32 v{T1}, v{T2}, 3, v244")
    P(f"v_lshlrev_b32 v{T1}, 7, v{T1}")
    P(f"v_lshrrev_b32 v244, 1, v244")
    P(f"v_lshl_add_u32 v244, v{T3}, 1, v244")
    P(f"v_lshl_add_u32 v{T1}, v244, 5, v{T1}")
    P(f"v_and_b32 v244, 3, v{L}")
    P(f"v_lshl_add_u32 v{V_AT}, v244, 3, v{T1}")
    for j in range(1, 4): P(f"v_xor_b32 v{V_AT+j}, {32*j}, v{V_AT}")
    P(f"v_lshlrev_b32 v{V_G4}, 9, v{T2}")
    P(f"v_lshl_add_u32 v{T1}, v{W_}, 7, v{SWK}")
    P(f"v_lshl_add_u32 v{T1}, v{RR}, 9, v{T1}")
    P(f"v_xor_b32 v{T2}, 64, v{T1}")
    for i in range(4): P(f"v_add_u32 v{V_OK+i}, {i*8*512 - 1024*i}, v{T1 if i % 2 == 0 else T2}")
    P(f"v_and_b32 v{T1}, 6, v{RR}")
    P(f"v_xor_b32 v{SWP}, v{PC}, v{T1}")
    P(f"v_lshlrev_b32 v{SWP}, 4, v{SWP}")
    P(f"v_lshl_add_u32 v{T1}, v{W_}, 7, v{SWP}")
    P(f"v_lshl_add_u32 v{T1}, v{RR}, 9, v{T1}")
    for i in range(4): P(f"v_add_u32 v{V_OV+i}, {i*8*512 - 1024*i}, v{T1}")
    P(f"v_add_u32 v{T1}, v{T0}, v{SWP}")
    for i in range(4): P(f"v_add_u32 v{V_OWO+i}, {i*8*896 - 1024*i}, v{T1}")
    P(f"v_mov_b32 v{V_M}, 0xff800000\nv_mov_b32 v{V_M+1}, 0xff800000")
    P(f"v_lshlrev_b32 v{V_KW}, 4, v{L}\nv_add_u32 v{V_KW}, s{S_LW4K}, v{V_KW}")
    P(f"s_mov_b32 s{S_C}, {f32hex(1.4426950408889634/16.0)}")
    P(f"s_or_b32 s{S_LEAD}, s{S_H}, s{S_W}")
    P(f"s_lshl_b32 s5, s{S_B}, 4\ns_add_u32 s5, s5, s{S_H}\ns_lshl_b32 s6, s5, 18")
    for x in srd(S_K, 82, "s6", 262144) + srd(S_V, 84, "s6", 262144): P(x)
    P(f"s_mul_i32 s6, s{S_H}, 229376")
    for x in srd(S_WO, 88, "s6", 229376): P(x)
    P(f"s_lshl_b32 s6, s{S_P}, 7\ns_add_u32 s5, s5, s6\ns_mul_i32 s5, s5, {WGS}")
    for x in srd(S_WS, 90, "s5", WGS): P(x)
    P(f"s_lshl_b32 s4, s{S_P}, 3\ns_add_u32 s4, s4, s{S_B}")
    P(f"s_lshl_b32 s5, s4, 9\ns_add_u32 s5, s5, {FOFF}")
    for x in srd(S_FL, 90, "s5", 512): P(x)
    P(f"s_lshl_b32 s5, s4, 2")
    for x in srd(S_DB, 98, "s5", 4): P(x)
    P(f"s_cmp_eq_u32 s{S_B}, 7\ns_cselect_b32 s5, 3, s{S_B}\ns_lshl_b32 s{ROT}, s5, 7")
    for j in range(1, 7):
        P(f"s_add_u32 s{ROT+j}, s{ROT+j-1}, 128\ns_cmp_eq_u32 s{ROT+j}, 896\ns_cselect_b32 s{ROT+j}, 0, s{ROT+j}")
    P(f"v_and_b32 v246, 1, v{L}\nv_lshrrev_b32 v247, 1, v{L}")
    P(f"v_and_b32 v244, 1, v247\nv_lshlrev_b32 v244, 12, v244\nv_lshl_add_u32 v244, v247, 7, v244\nv_lshl_add_u32 v244, v246, 13, v244")
    P(f"s_lshl_b32 s5, s{S_W}, 10\ns_add_u32 s5, s5, 0x38000")
    P(f"v_add_u32 v246, 1, v246")
    P(f"s_add_u32 s{RB}, s{S_WS}, s5\ns_addc_u32 s{RB+1}, s{S_WS+1}, 0")
    P(f"v_add_u32 v244, s5, v244")
    probe_st = [f"s_mov_b64 exec, {(1 << (2*len(cfg.races))) - 1}", f"buffer_store_dword v246, v244, s[{S_WS}:{S_WS+3}], 0 offen sc0 sc1", "s_mov_b64 exec, -1"]
    P(f"s_mov_b32 s{RB+3}, 0")
    P(f"v_lshlrev_b32 v{T1}, 3, v{L}")
    P(f"v_mov_b32 v248, 0\nv_mov_b32 v249, 0")
    P(f"s_cmp_lg_u32 s{S_LEAD}, 0\ns_cbranch_scc1 L_nz")
    P.slow(True)
    P(f"buffer_store_dwordx2 v[248:249], v{T1}, s[{S_FL}:{S_FL+3}], 0 offen sc0 sc1")
    P.slow(False)
    P("L_nz:")
    zero_mark = len(vm)
    for x in next_stages(-1, cfg.npro - cfg.pro_split): emit_dma(x)
    stamp()

    items = []
    fifo = []
    def item(stage, reads, B, D, first, A=None):
        items.append(dict(stage=stage, ev=ev_of[stage], reads=reads, B=B, D=D, first=first, A=A, pre=[], mem=[], ops=[]))
    def forced(lst, start, n):
        k = len(lst)
        for j in range(n):
            for x in lst[j*k//n:(j+1)*k//n]: fifo.append((start + j, start + j, x))
    def window(lst, rel, dl):
        for x in lst:
            for y in x.split('\n') if not x.startswith('s_add_u32 s') or '\ns_addc' not in x else [x]:
                fifo.append((rel, dl, y))
    def acc(f, base, mt): return [R(f, base + 16*(mt//2) + 8*u + 4*(mt % 2), 4) for u in range(2)]
    def frag(base, a): return [R('v', base + 16*a + 8*u, 4) for u in range(2)]
    for s in range(14):
        xb = V_QA + 16*((s//2) % 2) + 8*(s % 2)
        for mt in range(16):
            rel = (mt//4)*4096
            item(('wq', s), [('T', mt % 4, rel), ('T', mt % 4, rel + 512)], [R('v', xb, 4), R('v', xb+4, 4)], acc('v', V_X, mt), s == 0)
    items[cfg.probe_at]['mem'] = probe_st
    for t_, i0_ in cfg.kst.items():
        for i in range(4):
            it_ = i0_ + cfg.kst_gap*i
            while items[it_]['mem'] or it_ % 16 == 9: it_ += 1
            items[it_]['mem'] = [f"s_mov_b32 s{S_T+1}, {32*t_*512}", (f"buffer_load_dwordx4 a[{16*t_+4*i}:{16*t_+4*i+3}], v{V_OK+i}, s[{S_K}:{S_K+3}], s{S_T+1} offen offset:{1024*i}{fl(cfg.kv_flag)}", ('k', t_))]
    for k, t_ in enumerate(cfg.wopf):
        pre_ = [f"s_mul_i32 s{S_T+2}, s{S_B}, 28672", f"s_mul_i32 s{S_T+3}, s{S_W}, 7168", f"s_add_u32 s{S_T+2}, s{S_T+2}, s{S_T+3}", f"v_lshlrev_b32 v253, 4, v{V_LANE}"] if k == 0 else [f"s_add_u32 s{S_T+2}, s{S_T+2}, 1024"]
        while items[t_]['mem'] or t_ % 16 == 9: t_ += 1
        items[t_]['mem'] = pre_ + [f"buffer_load_dwordx4 a[0:3], v253, s[{S_WO}:{S_WO+3}], s{S_T+2} offen"]
    for k, r0 in enumerate(cfg.races):
        a_, b_ = RA[k]
        off = (k & 1)*4096 + k*128
        items[r0]['race'] = [f"s_mov_b32 s{a_}, 0", f"s_mov_b32 s{b_}, 0", f"s_mov_b32 s{RB+2}, 0"]
        first, second = ((a_, off), (b_, off + 8192)) if k % 2 == 0 else ((b_, off + 8192), (a_, off))
        items[r0+1]['race'] = [f"s_load_dword s{first[0]}, s[{RB}:{RB+1}], {first[1]}", f"s_load_dword s{second[0]}, s[{RB}:{RB+1}], {second[1]}"]
        for t_ in range(r0 + cfg.race_beg, r0 + cfg.race_len):
            items[t_]['race'] = [f"s_or_b32 s6, s{a_}, s{b_}", f"s_cmp_eq_u32 s{RB+2}, 0", f"s_cselect_b32 s{RB+2}, s6, s{RB+2}"]
        if cfg.dump_score: items[r0 + cfg.race_len]['race'] = [f"s_lshl_b32 s{RB+3}, s{RB+3}, 4", f"s_or_b32 s{RB+3}, s{RB+3}, s{RB+2}"]
        else: items[r0 + cfg.race_len]['race'] = [f"s_cmp_eq_u32 s{RB+2}, 1", f"s_addc_u32 s{RB+3}, s{RB+3}, 0", f"s_cmp_eq_u32 s{RB+2}, 2", f"s_subb_u32 s{RB+3}, s{RB+3}, 0"]
    def pack(a):
        o = []
        for u in range(2):
            b = V_X + 16*a + 8*u
            o += [f"v_cvt_pk_bf16_f32 v{b+i}, v{b+2*i}, v{b+2*i+1}" for i in range(4)]
        return o
    def maxcode(tl):
        o = []
        tb = V_T2
        for i in range(8):
            o.append(f"v_accvgpr_read_b32 v{tb+2*i}, a{16*tl+2*i}")
            o.append(f"v_accvgpr_read_b32 v{tb+2*i+1}, a{16*tl+2*i+1}")
            if i > 0: o.append(f"v_max3_f32 v{V_M+(i-1)//4}, v{tb+2*i-2}, v{tb+2*i-1}, v{V_M+(i-1)//4}")
        o.append(f"v_max3_f32 v{V_M+1}, v{tb+14}, v{tb+15}, v{V_M+1}")
        return o
    qend = len(items)
    for tl in range(16):
        for a in range(8):
            for T in range(2):
                rel = (a//2)*4096 + T*2048
                item(('k', tl), [('K', a % 2, rel)] if cfg.k128 else [('K', 2*(a % 2), rel), ('K', 2*(a % 2) + 1, rel)], frag(V_X, a), acc('a', 16*tl, T), a == 0)
    def packq(a):
        o = pack(a)
        if cfg.k128:
            for sw in ("v_permlane32_swap_b32", "v_permlane16_swap_b32"):
                for u in range(2):
                    b = V_X + 16*a + 8*u
                    o += [f"{sw} v{b}, v{b+2}", f"{sw} v{b+1}, v{b+3}"]
        return o
    for a in range(8): window(packq(a), qend - 16 + 2*a + 3, qend + 2*a - 1)
    G, Ta, Tb = 245, 246, 247
    misc1 = [f"v_sub_u32 v{V_AT+j}, v{V_AT+j}, v{V_G4}" for j in range(4)] + [
        f"s_lshr_b32 s5, s{S_W}, 1\ns_lshl_b32 s5, s5, 14\ns_and_b32 s6, s{S_W}, 1\ns_lshl_b32 s6, s6, 12\ns_add_u32 s5, s5, s6",
        f"v_lshlrev_b32 v{V_SO}, 4, v{L}", f"v_and_b32 v{V_SO}, 0x70, v{V_SO}",
        f"v_lshrrev_b32 v{G}, 4, v{L}", f"v_lshl_add_u32 v{V_SO}, v{G}, 7, v{V_SO}",
        f"v_bfe_u32 v{Ta}, v{L}, 3, 1", f"v_lshl_add_u32 v{V_SO}, v{Ta}, 10, v{V_SO}", f"v_add_u32 v{V_SO}, s5, v{V_SO}",
        f"s_lshl_b32 s5, s{S_W}, 7", f"s_lshl_b32 s6, s{S_H}, 2", "s_add_u32 s5, s5, s6", f"v_mov_b32 v{V_FO}, s5",
        f"s_lshr_b32 s5, s{S_H}, 2", "s_lshl_b32 s5, s5, 7", f"v_and_b32 v{V_VF}, 15, v{L}", f"v_lshlrev_b32 v{V_VF}, 2, v{V_VF}", f"v_add_u32 v{V_VF}, s5, v{V_VF}",
        f"s_mul_i32 s5, s4, {16*WGS}"] + srd(S_RD, 90, "s5", 16*WGS) + [
        f"s_mov_b32 s{S_OUT}, s96", f"s_mov_b32 s{S_OUT+1}, s97", f"s_mov_b32 s{S_OUT+2}, 1835008", f"s_mov_b32 s{S_OUT+3}, 0x20000",
        f"s_mov_b32 s3, {cfg.spin_max}"] + [f"v_mov_b32 v{V_L+i}, 0" for i in range(4)]
    misc2 = [
        f"s_lshr_b32 s5, s{S_H}, 3\ns_lshl_b32 s5, s5, 14\ns_bfe_u32 s6, s{S_H}, 0x10002\ns_lshl_b32 s6, s6, 12\ns_add_u32 s5, s5, s6", f"s_and_b32 s6, s{S_H}, 3", "s_lshl_b32 s6, s6, 10", "s_add_u32 s5, s5, s6",
        f"s_lshl_b32 s6, s{S_W}, 8", "s_add_u32 s5, s5, s6", f"s_mov_b32 s6, {WGS}",
        f"v_mul_lo_u32 v{V_VR}, v{G}, s6", f"v_lshl_add_u32 v{V_VR}, v{Ta}, 7, v{V_VR}", f"v_and_b32 v{Tb}, 7, v{L}",
        f"v_lshl_add_u32 v{V_VR}, v{Tb}, 4, v{V_VR}", f"v_add_u32 v{V_VR}, s5, v{V_VR}",
        f"s_lshl_b32 s5, s{S_B}, 7", f"s_lshl_b32 s6, s{S_H}, 3", "s_add_u32 s5, s5, s6", "s_mul_i32 s5, s5, 1792",
        f"s_mul_i32 s6, s{S_P}, 896", "s_add_u32 s5, s5, s6", f"s_lshr_b32 s6, s{S_W}, 1", "s_lshl_b32 s6, s6, 6", "s_add_u32 s5, s5, s6",
        f"s_and_b32 s6, s{S_W}, 1", "s_lshl_b32 s6, s6, 4", "s_add_u32 s5, s5, s6",
        f"v_mul_u32_u24 v{V_VO}, 1792, v{Tb}", f"v_lshl_add_u32 v{V_VO}, v{Ta}, 3, v{V_VO}", f"v_and_b32 v{Ta}, 1, v{G}",
        f"v_lshl_add_u32 v{V_VO}, v{Ta}, 5, v{V_VO}", f"v_add_u32 v{V_VO}, s5, v{V_VO}"]
    for tl in range(1, 16):
        base = qend + 16*tl
        if cfg.swin:
            window(maxcode(tl-1), base + 2, base + (17 if tl < 15 else 13))
            if 1 <= tl <= 5:
                n1 = len(misc1); window(misc1[(tl-1)*n1//5:tl*n1//5], base + 2, base + 17)
            m2t = 13 if (14 in cfg.kst or 15 in cfg.kst) else 14
            if tl == m2t: window(misc2[:13], base + 2, base + 17)
            if tl == m2t + 1: window(misc2[13:], base + 2, base + (17 if tl < 15 else 13))
        else:
            forced(maxcode(tl-1), base + 2, 12)
            if tl == 1: forced(misc1[:22], base + 14, 2)
            if tl == 2: forced(misc1[22:], base + 14, 2)
            if tl == 14: forced(misc2, base + 14, 2)
        if tl == 3 and cfg.pool: items[base + 14]['ldsw'] = True
        if tl == 5 and cfg.pool: items[base + 14]['ldsr'] = base + 16 + 10
        if tl == 6:
            pol = []
            if cfg.pool: pol += ["v_add_u32 v252, v252, v253", "v_add3_u32 v252, v252, v254, v255", f"v_readfirstlane_b32 s{RB+3}, v252"]
            pol += [(f"s_lshl_b32 s6, s{RB+3}, 1\ns_and_b32 s{RB+2}, s{S_W}, 1\ns_sub_u32 s6, s6, s{RB+2}\ns_lshr_b32 s{RB+2}, s6, 31" if cfg.force is None else
                     f"s_lshr_b32 s6, s{S_H}, 3\ns_xor_b32 s6, s6, s{S_P}\ns_xor_b32 s{RB+2}, s6, {cfg.force}"),
                    f"s_lshl_b32 s{RB+2}, s{RB+2}, 13", f"v_add_u32 v{V_SO}, s{RB+2}, v{V_SO}"]
            if cfg.swin: window(pol, base + 12, base + 17)
            else: forced(pol, base + 14, 2)
    send = len(items)
    def softmax(tl):
        pb = V_QA + 8*(tl % 2); tb = V_QA + 16
        e = []
        for i in range(16):
            u = i // 8
            e.append((i + 0, 0, f"v_accvgpr_read_b32 v{tb+i}, a{16*tl+i}"))
            e.append((i + 1, 1, f"v_fma_f32 v{tb+i}, v{tb+i}, s{S_C}, -v{V_MC+u}"))
            e.append((i + 2, 2, f"v_exp_f32 v{tb+i}, v{tb+i}"))
            if not cfg.ones: e.append((i + 4, 3, f"v_add_f32 v{V_L+2*u+i%2}, v{V_L+2*u+i%2}, v{tb+i}"))
            if i % 2 == 1: e.append((i + 4, 4, f"v_cvt_pk_bf16_f32 v{pb+i//2}, v{tb+i-1}, v{tb+i}"))
        e.sort(key=lambda x: (x[0], -x[1]))
        return [x[2] for x in e]
    def xreduce(r0, r1, op):
        a, b = V_T2, V_T2 + 1
        o = []
        for sw in ("v_permlane32_swap_b32", "v_permlane16_swap_b32"):
            o += [f"v_mov_b32 v{a}, v{r0}", f"v_mov_b32 v{b}, v{r1}", f"{sw} v{a}, v{r0}", f"{sw} v{b}, v{r1}",
                  f"{op} v{r0}, v{r0}, v{a}", f"{op} v{r1}, v{r1}, v{b}"]
        return o
    if cfg.ones: forced([f"v_mov_b32 v{V_ONE+i}, 0x3f803f80" for i in range(4)], send - 2, 2)
    pvbase = []
    pre = maxcode(15) + xreduce(V_M, V_M+1, "v_max_f32") + [f"v_mul_f32 v{V_MC+u}, s{S_C}, v{V_M+u}" for u in range(2)] + softmax(0)
    for tl in range(16):
        base = len(items)
        pvbase.append(base)
        pb = V_QA + 8*(tl % 2)
        Bp = [R('v', pb, 4), R('v', pb+4, 4)]
        if cfg.ones: item(('v', tl), [], Bp, [R('v', V_SUM, 4), R('v', V_SUM+4, 4)], tl == 0, A=R('v', V_ONE, 4))
        for mt in range(16):
            rel = (mt//4)*4096
            item(('v', tl), [('T', mt % 4, rel), ('T', mt % 4, rel + 2048)], Bp, acc('v', V_X, mt), tl == 0)
        if tl == 0: items[base]['pre'] = pre
        if tl == 8: items[base+2]['mem'] = [f"v_mov_b32 v{V_RDY}, 0", f"buffer_load_dword v{V_RDY}, v{V_RDY}, s[{S_DB}:{S_DB+3}], 0 offen"]
        if tl == cfg.code_pf2:
            items[base+5]['mem'] = [f"s_lshl_b32 s5, s{S_W}, 12", f"s_add_u32 s5, s5, CODE_END_OFF - 16384", f"v_lshlrev_b32 v{V_T2+2}, 6, v{L}",
                                    f"v_add_u32 v{V_T2+2}, s5, v{V_T2+2}", f"global_load_dword v{V_T2+2}, v{V_T2+2}, s[92:93]"]
        if tl < 15: forced(softmax(tl+1), base, len(items) - base)
    pvend = len(items)
    outbase = pvend
    if cfg.ones: fin = [f"v_rcp_f32 v{V_L+1}, v{V_SUM}", f"v_rcp_f32 v{V_L+3}, v{V_SUM+4}"]
    else: fin = [f"v_add_f32 v{V_L}, v{V_L}, v{V_L+1}", f"v_add_f32 v{V_L+2}, v{V_L+2}, v{V_L+3}"] + xreduce(V_L, V_L+2, "v_add_f32") + \
          [f"v_rcp_f32 v{V_L+1}, v{V_L}", f"v_rcp_f32 v{V_L+3}, v{V_L+2}"]
    def norm(a):
        o = []
        for u in range(2):
            b = V_X + 16*a + 8*u
            for i in range(4):
                o += [f"v_mul_f32 v{b+2*i}, v{b+2*i}, v{V_L+1+2*u}", f"v_mul_f32 v{b+2*i+1}, v{b+2*i+1}, v{V_L+1+2*u}", f"v_cvt_pk_bf16_f32 v{b+i}, v{b+2*i}, v{b+2*i+1}"]
        return o
    window(fin, pvend - 15, pvend - 2)
    user = {}
    seqall = []
    for j in range(7):
        if j >= 1: seqall += [(j, a, 2*b + t) for b in range(2) for a in range(8) for t in range(2)]
        else: seqall += [(j, a, nt) for a in range(8) for nt in range(4)]
    if cfg.prenorm:
        km = cfg.kmerge
        seqall = [(j, a, nt) for a in range(km) for j in range(2) for nt in range(4)] + [(0, a, nt) for a in range(km, 8) for nt in range(4)] + [(1, a, 2*b + t) for b in range(2) for a in range(km, 8) for t in range(2)] + seqall[64:]
    for j, a, nt in seqall:
        ab = V_QA if j % 2 == 0 else V_T2
        rel = (a % 4)*4096
        if j < 2:
            fi = 16*(2*j + a//4) + 4*(a % 4) + nt
            item(('v', 15), [], frag(V_X, a), acc('v', ab, nt), a == 0, A=R('a', 4*fi, 4))
            user[fi] = len(items) - 1
        else:
            item(('wo', 2*j + a//4), [('T', nt, rel), ('T', nt, rel + 2048)], frag(V_X, a), acc('v', ab, nt), a == 0)
    done_at = {}
    for n_, (j, a, nt) in enumerate(seqall): done_at[(j, nt//2)] = n_
    first_need = {}
    for n_, (j, a, nt) in enumerate(seqall): first_need.setdefault(a, n_)
    first_use = {}
    for n_, (j, a, nt) in enumerate(seqall): first_use.setdefault((j, nt//2), n_)
    for a in range(8): window(norm(a) if cfg.prenorm else pack(a), pvend - 16 + 2*a + 3, outbase + first_need[a] - 1)
    for tl in range(16):
        for n_ in range(8):
            fi = 4*tl + n_//2
            items[pvbase[tl] + 1 + 2*n_].setdefault('pr', []).append((fi, n_ % 2))
    for k_, t_ in enumerate(cfg.pf3):
        while items[t_]['mem']: t_ += 1
        tv = V_RDY if t_ < send else V_T2 + 2
        items[t_]['mem'] = [f"L_pf{k_}:", f"s_bfe_u32 s7, s2, 0x20003", f"s_lshl_b32 s7, s7, 2", f"s_add_u32 s7, s7, s{S_W}", f"s_lshl_b32 s7, s7, 10",
                            f"s_add_u32 s7, s7, L_pf{k_} - {KNAME} + {cfg.pf_off}", f"v_lshlrev_b32 v{tv}, 6, v{L}", f"v_add_u32 v{tv}, s7, v{tv}",
                            f"v_min_u32 v{tv}, CODE_END_OFF - 64, v{tv}",
                            "s_mov_b64 exec, 0xffff", f"global_load_dword v{tv}, v{tv}, s[92:93]", "s_mov_b64 exec, -1"]
    N = len(items)
    def sdst(j, q): return V_X + 8*((4*j + q) % 16) + 4
    def cvts(j, q):
        b = (V_QA if j % 2 == 0 else V_T2) + 8*q
        d = sdst(j, q)
        o = []
        for i in range(4):
            if not cfg.prenorm: o += [f"v_mul_f32 v{b+2*i}, v{b+2*i}, v{V_L+1+2*(q % 2)}", f"v_mul_f32 v{b+2*i+1}, v{b+2*i+1}, v{V_L+1+2*(q % 2)}"]
            o.append(f"v_cvt_pk_bf16_f32 v{d+i}, v{b+2*i}, v{b+2*i+1}")
        return o
    lasts = []
    for c in cfg.groups: lasts.append((lasts[-1] if lasts else -1) + c)
    sched = []
    pos = cfg.st_start
    tS = {}
    sq = [(j, q) for j in range(7) for q in range(4)][:-2]
    tail = []
    busy = set()
    vt = 0
    for (j, q) in sq:
        rel = done_at[(j, q//2)] + 3
        vt = max(vt, rel) + cfg.cw
        pos = max(pos, vt)
        while pos % 32 == 25: pos += 1
        dl = min(pos - 1, first_use.get((j+2, q//2), 999) - 1, 223)
        window(cvts(j, q), outbase + rel, outbase + dl)
        tS[(j, q)] = pos
        if (4*j + q) >= 16: assert tS[((4*j+q-16)//4, q)] < rel
        if pos < 224: items[outbase + pos]['ops'].append(('S', j, q))
        else: tail.append(('S', j, q))
        pos += cfg.st_gap
    tail += [('X', 6, 2), ('X', 6, 3)]
    for j in lasts[:-1]:
        t_ = tS[(j, 3)] + cfg.t_flag
        while t_ < 224 and (t_ % 32 == 25 or items[outbase + t_]['ops']): t_ += 1
        if t_ < 224: items[outbase + t_]['ops'].append(('F', j))
        else: tail.append(('F', j))
    npoll = {lasts[0]: 1}
    j0 = 0
    rest = lasts
    if cfg.instream:
        tp, tc, gp = cfg.instream
        def put(t_, op):
            while t_ % 32 == 25 or items[outbase + t_]['ops']: t_ += 1
            items[outbase + t_]['ops'].append(op); return t_
        put(tp, ('P', lasts[0], 0)); t_ = put(tc, ('C', lasts[0]))
        for j in range(lasts[0] + 1):
            for i in range(4): t_ = put(t_ + gp, ('L', j, i))
        j0 = lasts[0] + 1; rest = lasts[1:]; npoll[rest[0]] = 1
    if len(rest) == 1: tail += [('F', 6), ('P', 6, 0)]
    elif cfg.early_a is None: tail += [('P', rest[0], 0), ('F', 6)]
    else: items[outbase + cfg.t_pa]['ops'].append(('P', rest[0], 0))
    for k, j1 in enumerate(rest):
        ld = [('L', j, i) for j in range(j0, j1 + 1) for i in range(4)]
        tail.append(('C', j1))
        if k + 1 < len(rest):
            ks = sorted({min(len(ld), x) for x in cfg.keeps}, reverse=True)
            npoll[rest[k+1]] = len(ks)
            for n_, op in enumerate(ld + [None]):
                if k == 0 and cfg.early_a is not None and n_ == cfg.early_a: tail.append(('F', 6))
                if len(ld) - n_ in ks: tail.append(('P', rest[k+1], ks.index(len(ld) - n_)))
                if op: tail.append(op)
        else: tail += ld
        j0 = j1 + 1

    def vwait(tag):
        idx = vm.index(tag)
        P(f"s_waitcnt vmcnt({min(63, len(vm)-1-idx)})")
    def emit_op(op):
        k = op[0]; j = op[1]
        if k in 'SX':
            q = op[2]
            if k == 'X':
                for x in cvts(j, q): P(x)
            if q == 0: P(f"s_lshl_b32 s{S_T}, s{ROT+j}, {PSH}")
            b = sdst(j, q)
            P(f"buffer_store_dwordx4 v[{b}:{b+3}], v{V_SO}, s[{S_WS}:{S_WS+3}], s{S_T} offen offset:{(q % 2)*2048 + (q//2)*512}{fl(cfg.st_flag)}")
            vm.append(('S', j, q))
        elif k == 'F':
            if j == lasts[0]:
                P("L_rdy:")
                P(f"v_cmp_eq_u32 vcc, 1, v{V_RDY}")
                P("s_cbranch_vccnz L_rdy_ok")
                P.slow(True)
                P(f"v_mov_b32 v{V_RDY}, 0")
                P(f"buffer_load_dword v{V_RDY}, v{V_RDY}, s[{S_DB}:{S_DB+3}], 0 offen sc0 sc1")
                P("s_waitcnt vmcnt(0)")
                P("s_sub_u32 s3, s3, 1\ns_cmp_gt_i32 s3, 0\ns_cbranch_scc1 L_rdy")
                P.slow(False)
                P("L_rdy_ok:")
                if cfg.anchor is not None: P("s_mov_b64 vcc, 0")
            P(f"s_add_u32 s6, s{RB+2}, {j+1}\nv_mov_b32 v{V_FV}, s6")
            vwait(('S', j, 3))
            if j == 6: stamp()
            P("s_mov_b64 exec, 1")
            P(f"buffer_store_dword v{V_FV}, v{V_FO}, s[{S_FL}:{S_FL+3}], 0 offen sc0 sc1")
            P("s_mov_b64 exec, -1")
            vm.append(op)
        elif k == 'P':
            pv = V_PV if op[2] == npoll[j] - 1 else V_OV + op[2]
            P(f"buffer_load_dword v{pv}, v{V_VF}, s[{S_FL}:{S_FL+3}], 0 offen sc0 sc1")
            vm.append(op)
        elif k == 'C':
            for r_ in range(npoll[j] - 1):
                vwait(('P', j, r_))
                P(f"v_and_b32 v{V_M}, 15, v{V_OV + r_}")
                P(f"v_cmp_gt_u32 vcc, {j+1}, v{V_M}")
                P(f"s_cbranch_vccz L_ok{j}")
                P.slow(True)
            vwait(('P', j, npoll[j] - 1))
            P(f"L_chk{j}:")
            P(f"v_and_b32 v{V_M}, 15, v{V_PV}")
            P(f"v_cmp_gt_u32 vcc, {j+1}, v{V_M}")
            P(f"s_cbranch_vccz L_ok{j}")
            P.slow(True)
            P(f"buffer_load_dword v{V_PV}, v{V_VF}, s[{S_FL}:{S_FL+3}], 0 offen sc0 sc1")
            P("s_waitcnt vmcnt(0)")
            P(f"s_sub_u32 s3, s3, 1\ns_cmp_gt_i32 s3, 0\ns_cbranch_scc1 L_chk{j}")
            P.slow(False)
            P(f"L_ok{j}:")
            if j == lasts[0]:
                P(f"v_cmp_lt_u32 vcc, 15, v{V_PV}")
                P(f"v_mbcnt_lo_u32_b32 v{V_M+1}, -1, 0\nv_mbcnt_hi_u32_b32 v{V_M+1}, -1, v{V_M+1}\nv_lshrrev_b32 v{V_M+1}, 4, v{V_M+1}")
                P(f"v_lshrrev_b32 v{V_M+1}, v{V_M+1}, vcc_lo")
                for i in range(4):
                    P(f"v_bfe_u32 v{V_AK+i}, v{V_M+1}, {4*i}, 1")
                    P(f"v_lshl_add_u32 v{V_AK+i}, v{V_AK+i}, 13, v{V_VR}")
            if j == 6: stamp()
        elif k == 'L':
            i = op[2]; n = 4*j + i
            if i == 0: P(f"s_lshl_b32 s{S_T+1}, s{ROT+j}, {PSH}")
            else: P(f"s_add_u32 s{S_T+1}, s{S_T+1}, {4*WGS}")
            P(f"buffer_load_dwordx4 a[{4*n}:{4*n+3}], v{V_AK+i}, s[{S_RD}:{S_RD+3}], s{S_T+1} offen{fl(cfg.ld_flag)}")
            vm.append(op)
    nb = 0
    for it in items:
        if it['reads']: it['buf'] = V_A + 4*(nb % 8); nb += 1
    rd_items = [i for i, it in enumerate(items) if it['reads']]
    issue_at = {}
    for k, j_ in enumerate(rd_items):
        if k >= cfg.pd:
            i_ = max(rd_items[k - cfg.pd], j_ - cfg.pd - 1)
            assert i_ not in issue_at
            issue_at[i_] = j_
    areg = {'K': V_AK, 'T': V_AT, 'X': V_AX, 'U': V_AK}
    regbase = {}
    def lds_off(kind, idx, sb, rel):
        r = areg[kind] + idx
        off = sb + rel - regbase.get(r, 0)
        if off < 0 or off > 65535:
            nbse = (sb // 65536) * 65536
            P(f"v_add_u32 v{r}, {(nbse - regbase.get(r, 0)) & 0xffffffff}, v{r}")
            regbase[r] = nbse; off = sb + rel - nbse
            late[0] += 1
        return r, off
    late = [0]
    baseA = []
    def issue_reads(i):
        it = items[i]
        sb = slot_of[it['stage']] * 16384
        for k, (kind, idx, rel) in enumerate(it['reads']):
            r, off = lds_off(kind, idx, sb, rel)
            ab = it['buf']
            if kind == 'K' and cfg.k128: P(f"ds_read_b128 v[{ab}:{ab+3}], v{r} offset:{off}")
            else: P(f"{'ds_read_b64' if kind == 'K' else 'ds_read_b64_tr_b16'} v[{ab+2*k}:{ab+2*k+1}], v{r} offset:{off}")
            lds.append(i)
    def early_rebase(i):
        o = []
        for (kind, idx) in {(k_, x_) for k_, x_, _ in items[i]['reads']}:
            r = areg[kind] + idx
            nxt = next((j for j in rd_items if j > i and any(k_ == kind and x_ == idx for k_, x_, _ in items[j]['reads'])), None)
            if nxt is None or items[nxt]['stage'] not in slot_of or nxt - i > 40: continue
            sb = slot_of[items[nxt]['stage']] * 16384
            if not (0 <= sb - regbase.get(r, 0) <= 65536 - 16384):
                nbse = (sb // 65536) * 65536
                o.append(f"v_add_u32 v{r}, {(nbse - regbase.get(r, 0)) & 0xffffffff}, v{r}")
                regbase[r] = nbse
        return o
    published = [-1]
    poolslot = [None]; poolback = [None]
    lead = [None]
    pend = []
    xq = []
    def publish(e, i):
        nonlocal pend
        for x in pend: emit_dma(x)
        if events[e]:
            idx = max(k for k, tg in enumerate(vm) if tg in events[e])
            for s in events[e]: assert vm.count(s) == 4, (e, s)
            if events[e][0] in wpos:
                n_ = len(lds) - 1 - wpos[events[e][0]]
                if wpos[events[e][0]] > ldone[0]: P(f"s_waitcnt lgkmcnt({min(15, n_)})")
            else: P(f"s_waitcnt vmcnt({min(63, len(vm)-1-idx)})")
            waited[0] = max(waited[0], idx)
            if idx >= zero_mark and lead[0] is None: lead[0] = i + 3
        elif e == 47:
            assert ldone[0] == len(lds) - 1
        P("s_barrier")
        if cfg.stamps and e in cfg.stamp_events: stamp()
        published[0] = e
        if e >= 2:
            for s in events[e-2]:
                if not (s[0] == 'wo' and s[1] < 4) and not (cfg.xfree and s[0] == 'x'): free.append(slot_of[s])
            if e >= 35 and (e - 35) % 4 == 0 and (e - 35)//4 < 4: free.append(slot_of[('wo', (e - 35)//4)])
        if cfg.xfree and e >= 1 and events[e-1] and events[e-1][0][0] == 'x': free.append(slot_of[events[e-1][0]])
        if e == poolback[0]: free.append(poolslot[0])
        pend = next_stages(e, cfg.maxn if e < 47 else 10)
        if events[e] and events[e][0][0] == 'x':
            j = events[e][0][1]
            for s2 in range(2):
                for u in range(2): xq.append((j, s2, u))
    def xread():
        j, s2, u = xq.pop(0)
        r, off = lds_off('X', s2, slot_of[('x', j)]*16384, 2048*u)
        b = V_QA + 16*(j % 2) + 8*s2 + 4*u
        P(f"ds_read_b128 v[{b}:{b+3}], v{r} offset:{off}")
        lds.append(16*(2*j + s2))
        if u == 1 and ('x', j+1) in slot_of:
            sb = slot_of[('x', j+1)]*16384
            if not (0 <= sb - regbase.get(r, 0) <= 65536 - 16384):
                nbse = (sb // 65536) * 65536
                d = (nbse - regbase.get(r, 0)) & 0xffffffff
                regbase[r] = nbse
                return [f"v_add_u32 v{r}, {d}, v{r}"]
        return []
    def wait_for(i):
        assert not any(16*(2*j + s2) <= i for j, s2, u in xq)
        last = max(k for k, tg in enumerate(lds) if tg <= i)
        ldone[0] = max(ldone[0], last)
        P(f"s_waitcnt lgkmcnt({min(15, len(lds)-1-last)})")
    for k_, w_ in enumerate(cfg.qwarm):
        if w_ < 0: P(f'QW{k_}:')
    publish(0, -1)
    while xq:
        for x in xread(): P(x)
    for k in range(cfg.pd): issue_reads(rd_items[k])
    wait_for(0)
    pub_at = {}
    for i in range(N):
        t_ = issue_at.get(i)
        if t_ is not None and items[t_]['ev'] not in pub_at: pub_at[items[t_]['ev']] = i - 1
    pub_at[46] = pvend - 7; pub_at[47] = outbase + 2
    pub_item = {v: k for k, v in pub_at.items() if k > 0}
    since = 99
    over = 0
    for i, it in enumerate(items):
        if cfg.anchor is not None:
            if i == pvbase[cfg.anchor]: P('ANCHOR:')
            for w_ in cfg.warm:
                if i == pvbase[w_] + 8: P(f'WARM{w_}:')
        if i == send:
            for q_ in range(4):
                P(f"v_mov_b32 v{V_AK+q_}, v{V_AT+q_}"); regbase[V_AK+q_] = regbase.get(V_AT+q_, 0)
        for x in it['pre']: P(x)
        A = it['A'] or f"v[{it['buf']}:{it['buf']+3}]"
        def mf(u): P(f"v_mfma_f32_16x16x32_bf16 {it['D'][u]}, {A}, {it['B'][u]}, {'0' if it['first'] else it['D'][u]}")
        mf(0); P.ins[-1].m0 = True
        if i + 1 < N and (items[i+1]['reads'] or max(k for k, tg in enumerate(lds) if tg <= i + 1) > ldone[0]): wait_for(i + 1)
        must = []
        if i in issue_at:
            issue_reads(issue_at[i])
            must = early_rebase(issue_at[i])
        if True:
            for _ in range(2 - (len(items[issue_at[i]]['reads']) if i in issue_at else 0)):
                if fifo and fifo[0][0] <= i and cost(fifo[0][2]) == 1: P(fifo.pop(0)[2])
        mf(1); P.ins[-1].m1 = True
        if cfg.extra and i < cfg.extra_end and i % 16 in (1, 5, 11, 14)[:cfg.extra]:
            for u in range(2): P(f"v_mfma_f32_16x16x32_bf16 a[{4+4*u}:{7+4*u}], {A}, {it['B'][u]}, 0")
        if cfg.sextra and qend <= i < qend + 16*15 and (i % 16) * cfg.sextra // 16 != ((i % 16) + 1) * cfg.sextra // 16:
            P(f"v_mfma_f32_16x16x32_bf16 a[240:243], {A}, {it['B'][0]}, 0")
            P(f"ds_read_b64 v[128:129], v{V_AK} offset:0\nds_read_b64 v[130:131], v{V_AK+1} offset:2048"); lds.extend([10**6, 10**6])
            P(f"v_mfma_f32_16x16x32_bf16 a[244:247], {A}, {it['B'][1]}, 0")
        room = cfg.pvroom if pvend - 17 <= i < pvend else 2
        for x in it.get('race', []): P(x)
        for (fi, hf) in it.get('pr', []):
            r, off = lds_off('U', fi % 4, slot_of[('wo', fi//16)]*16384, ((fi % 16)//4)*4096 + 2048*hf)
            P(f"ds_read_b64_tr_b16 a[{4*fi+2*hf}:{4*fi+2*hf+1}], v{r} offset:{off}")
            lds.append(min(user[fi], outbase + 1))
        shadow = True
        since += 1
        for k_, w_ in enumerate(cfg.qwarm):
            if w_ == i: P(f'QW{k_}:')
        if i in pub_item:
            publish(pub_item[i], i); shadow = False; room -= 1
            if xq: must += xread(); room -= 1
        elif i == lead[0]:
            P(f"s_cmp_lg_u32 s{S_LEAD}, 0\ns_cbranch_scc1 L_nl")
            P.slow(True)
            P("v_mov_b32 v249, 1\ns_mov_b64 exec, 1")
            P(f"buffer_store_dword v249, v248, s[{S_DB}:{S_DB+3}], 0 offen sc0 sc1")
            P("s_mov_b64 exec, -1")
            P.slow(False)
            P("L_nl:")
            shadow = False; room -= 1
        else:
            nxtpub = min([x for x in pub_item if x > i], default=N)
            nd = sum(1 for x in pend if x[0] == 'D')
            urgent = len(pend) >= nxtpub - i
            if xq:
                if pend and pend[0][0] == 'S': emit_dma(pend.pop(0))
                must += xread(); room -= 1; shadow = False
            elif pend and pend[0][0] in 'SV':
                emit_dma(pend.pop(0)); shadow = False
                if (urgent or qend - 40 <= i < outbase) and pend[0][0] == 'S': emit_dma(pend.pop(0)); room -= 1
                if urgent and len(pend) >= nxtpub - i: emit_dma(pend.pop(0)); room -= 2; since = 0
            elif pend and not it['ops'] and not it['mem'] and (urgent or (not must and since >= min((cfg.dma_gap if i < qend - 40 else cfg.out_gap if i >= outbase else cfg.kv_gap), max(1, (nxtpub - i) // len(pend))))):
                emit_dma(pend.pop(0)); room -= 2; since = 0; shadow = False
        if it.get('ldsw'):
            poolslot[0] = free.pop()
            P(f"s_lshl_b32 s7, s{S_W}, 2\ns_add_u32 s7, s7, {poolslot[0]*16384}\nv_mov_b32 v250, s7\nv_mov_b32 v251, s{RB+3}")
            P("ds_write_b32 v250, v251"); lds.append(i + 8)
        if it.get('ldsr'):
            P(f"v_mov_b32 v250, {poolslot[0]*16384}")
            P("ds_read_b128 v[252:255], v250"); lds.append(it['ldsr'])
            poolback[0] = published[0] + 3
        for x in it['mem']:
            tag = ('m', 0)
            if isinstance(x, tuple): x, tag = x
            P(x); room -= 1
            if x.startswith(('buffer', 'global')): vm.append(tag)
        for op in it['ops']: emit_op(op); shadow = False
        for x in must: P(x); room -= 1; shadow = False
        while fifo and fifo[0][0] <= i:
            c = cost(fifo[0][2])
            c = (0 if shadow else 1) if c == 'S' else c
            need = any(f[1] <= i for f in fifo[:80])
            if not need:
                accu = 0
                for f in fifo[:120]:
                    if f[0] > i + 4 or f[0] == f[1]: break
                    cc = cost(f[2]); accu += 1 if cc == 'S' else cc
                    if accu > sum(2 if t_ in issue_at else cfg.freecap for t_ in range(i + 1, f[1] + 1)): need = True; break
            if c <= room or need:
                P(fifo.pop(0)[2]); room -= c; shadow = False
            else: break
        if room < 0 and (i < qend or i >= outbase): over += -room
    assert not fifo and not pend
    stamp()
    A1 = 0
    DS = [8*j + 8 for j in range(7)]
    def selector():
        P("v_mbcnt_lo_u32_b32 v64, -1, 0\nv_mbcnt_hi_u32_b32 v64, -1, v64")
        P("v_and_b32 v65, 1, v64\nv_lshlrev_b32 v65, 4, v65\nv_mov_b32 v66, 0x3f80\nv_lshlrev_b32 v66, v65, v66\nv_bfe_u32 v65, v64, 1, 3")
        for k in range(4):
            P(f"v_cmp_eq_u32 vcc, {k}, v65")
            P(f"v_cndmask_b32 v{A1+k}, 0, v66, vcc")
    for op in tail:
        emit_op(op)
        if op == ('X', 6, 3): selector()
    def finp(j):
        P(f"v_cvt_pk_bf16_f32 v{DS[j]}, v{DS[j]}, v{DS[j]+1}")
        P(f"v_cvt_pk_bf16_f32 v{DS[j]+1}, v{DS[j]+2}, v{DS[j]+3}")
        P("s_mov_b32 exec_hi, 0")
        P(f"buffer_store_dwordx2 v[{DS[j]}:{DS[j]+1}], v{V_VO}, s[{S_OUT}:{S_OUT+3}], s{ROT+j} offen{fl(cfg.out_flag)}")
        vm.append(('O', j))
        P("s_mov_b32 exec_hi, -1")
    for j in range(7):
        d = R('v', DS[j], 4)
        for i in range(4):
            n = 4*j + i
            vwait(('L', j, i))
            P(f"v_mfma_f32_16x16x32_bf16 {d}, v[{A1}:{A1+3}], a[{4*n}:{4*n+3}], {'0' if i == 0 else d}")
        if j >= 1: finp(j - 1)
    finp(6)
    if cfg.stamps:
        P("s_waitcnt vmcnt(0)")
        stamp()
        P("s_waitcnt lgkmcnt(0)")
        P(f"s_add_u32 s{S_T}, s90, 0x7000000\ns_addc_u32 s{S_T+1}, s91, 0\ns_mov_b32 s{S_T+2}, 0x100000\ns_mov_b32 s{S_T+3}, 0x20000")
        P(f"s_lshl_b32 s5, s2, 10\ns_lshl_b32 s6, s{S_W}, 8\ns_add_u32 s5, s5, s6")
        P("v_mov_b32 v1, s5")
        for k in range(nst[0]):
            P(f"v_mov_b32 v2, s{S_ST+2*k}\nv_mov_b32 v3, s{S_ST+2*k+1}")
            P(f"buffer_store_dwordx2 v[2:3], v1, s[{S_T}:{S_T+3}], 0 offen offset:{8*k}")
            P("s_nop 2")
        P(f"v_mov_b32 v2, s{RB+3}\nv_mov_b32 v3, 0\nbuffer_store_dwordx2 v[2:3], v1, s[{S_T}:{S_T+3}], 0 offen offset:248")
        P("s_waitcnt vmcnt(0)")
    P("L_end:")
    P("s_endpgm")
    for _ in range(cfg.pad): P("s_nop 0")
    P.info = dict(late=late[0], over=over)
    return P, nst[0]

def gen(cfg):
    main, nst = gen_main(cfg)
    if cfg.align:
        import align
        main.info['align'] = align.align_items(main, lambda t: f'.amdgcn_target "amdgcn-amd-amdhsa--gfx950"\n.text\n.set CODE_END_OFF, L_end - {KNAME}\n' + t, cfg.align)
    if cfg.qwarm:
        import align
        main.info['qhooks'] = align.page_hooks(main, lambda t: f'.amdgcn_target "amdgcn-amd-amdhsa--gfx950"\n.text\n.set CODE_END_OFF, L_end - {KNAME}\n' + t, 1, KNAME + ":", "QW", "Q", cfg.koff, False)
    if cfg.anchor is not None:
        import align
        main.info['hooks'] = align.page_hooks(main, lambda t: f'.amdgcn_target "amdgcn-amd-amdhsa--gfx950"\n.text\n.set CODE_END_OFF, L_end - {KNAME}\n' + t, cfg.hooklines)
    s = HEADER
    s += f"; @launch grid=(256,1,1) block=(256,1,1) lds={cfg.nslots*16384}\n"
    s += '.amdgcn_target "amdgcn-amd-amdhsa--gfx950"\n.text\n'
    s += f".set CODE_END_OFF, L_end - {KNAME}\n"
    s += f".globl {KNAME}\n.p2align 12\n.p2align 8\n.type {KNAME},@function\n" + main.text()
    s += kd(KNAME, 512, 102, 256)
    Ls = s.split('\n')
    lastk = max(i for i, l in enumerate(Ls) if 's[8:11]' in l and 'buffer_load' in l)
    assert lastk < min(i for i, l in enumerate(Ls) if 'v_mul_lo_u32 v200' in l), "K voffsets overwritten too early"
    lastq = max(i for i, l in enumerate(Ls) if ' lds' in l and ('s[16:19]' in l or 's[24:27]' in l))
    assert lastq < min(i for i, l in enumerate(Ls) if 'v_lshlrev_b32' in l and ' v192, 4' in l)
    return s, (main.nops, main.info)

if __name__ == "__main__":
    s, nops = gen(Cfg())
    open('g11.s', 'w').write(s)
    print("nops/info", nops, "lines", s.count('\n'))
```

```python
import sys, struct
sys.path.insert(0, 'gen')
from asmdsl import Prog, R
from gen1 import KNAME, HEADER, f32hex, kd

class Cfg:
    nslots = 10
    pd = 6
    kv_flag = "nt"
    w_flag = ""
    wo_flag = ""
    x_flag = ""
    st_flag = "sc0 sc1"
    ld_flag = "sc0 sc1"
    out_flag = ""
    stamps = False
    stamp_op = "s_memrealtime"
    stamp_events = ()
    code_pf2 = None
    no_dma = False
    dma_gap = 3
    kv_gap = 2
    ahead = 2
    ahead0 = 3
    ramp_ev = 14
    q_ahead = 3
    wo_ahead = 99
    wo_free = 46
    npro = 5
    pro_split = 2
    spin_max = 200000
    st_start = 40
    st_gap = 6
    t_flag = 40
    groups = (4, 3)
    keeps = (6,)
    early_a = None
    t_pa = 209
    ones = True
    lastsplit = True
    maxn = 3
    fullp = False
    brace = 0
    lflag = True
    vreq = {}
    tlb = None
    pstamp = False
    qwarm = ()
    koff = 768
    anchor = 12
    warm = (12, 13, 14)
    hooklines = 1
    align = 0
    k128 = False
    prenorm = True
    kmerge = 1
    freecap = 3
    q_sched = ()
    xfree = False
    pf3 = (240, 440, 590, 690)
    pad = 0
    pf0 = 16
    pf_off = 3072
    out_gap = 1
    wo_req = (27, 31, 35, 39, 43, 43, 44, 44, 44, 45, 45, 46, 47, 47)
    w64 = True
    instream = None
    swin = True
    kst = {4: 58, 9: 86, 14: 138}
    kst_gap = 2
    wopf = (18, 20, 22, 24, 26, 28, 30)
    sextra = 0
    extra = 0
    extra_end = 176
    kreq = ()
    cw = 2
    pvroom = 3
    boost = ()
    pool = True
    wo_early = ()
    probe_at = 20
    race_beg = 4
    races = (86, 118)
    race_len = 22
    dump_score = False
    force = None
    iod = None
    rot = 3
    def __init__(self, **kw):
        for k, v in kw.items(): setattr(self, k, v)

PART = 114688
FLAG_OFF = 0x2000000
S_K, S_V, S_WQ, S_WO, S_X, S_WS = 8, 12, 16, 20, 24, 28
S_P, S_B, S_H, S_W = 32, 33, 34, 35
S_LW4K, S_LEAD, S_OFF, S_C = 36, 37, 38, 39
S_T = 40
S_FL = 44
S_ST = 48
S_DB = 76
S_ROT = 64
S_RD = S_X
S_OUT = S_WQ
V_X = 0
V_QA = 128
V_A = 160
V_OWQ, V_OX, V_OK, V_OV, V_OWO, V_AK, V_AT = 192, 196, 200, 204, 208, 212, 216
V_M, V_MC = 220, 222
V_T2 = 224
V_AX, V_G4, V_LANE = 240, 242, 243
V_SO, V_FO, V_RDY, V_VF = 192, 193, 194, 195
V_L = 196
V_VR, V_VO, V_PV, V_FV = 200, 201, 202, 203
V_KW = 222
V_ONE, V_SUM = 244, 248

def cost(x):
    op = x.split()[0]
    if op.startswith('s_'): return 'S'
    if op in ('v_exp_f32', 'v_rcp_f32'): return 2
    return 1

def gen_main(cfg):
    P = Prog()
    ROT = 80 if cfg.stamps else S_ROT
    LOC = True
    RB = 72 if not cfg.stamps else 72
    RA = [(56+2*k, 57+2*k) for k in range(4)] if not cfg.stamps else [(87, 88), (89, 101), (0, 1), (98, 99)]
    WGS = 262144 if LOC else PART
    PSH = 8 if LOC else 5
    FOFF = 0x6000000 if LOC else FLAG_OFF
    nst = [0]
    def stamp():
        if cfg.stamps:
            P(f"{cfg.stamp_op} s[{S_ST+2*nst[0]}:{S_ST+2*nst[0]+1}]")
            nst[0] += 1
    def fl(f): return (" " + f) if f else ""
    def srd(b, lo, off, size):
        return [f"s_add_u32 s{b}, s{lo}, {off}\ns_addc_u32 s{b+1}, s{lo+1}, 0", f"s_mov_b32 s{b+2}, {size}", f"s_mov_b32 s{b+3}, 0x20000"]
    P(f"{KNAME}:")
    stamp()
    P("s_cmp_ge_u32 s2, 256")
    P("s_cbranch_scc1 L_end")
    P("s_and_b32 s3, s2, 7")
    P(f"s_lshr_b32 s{S_P}, s3, 2")
    P(f"s_mul_i32 s5, s{S_P}, 40")
    P("s_add_u32 s6, s0, s5")
    P("s_addc_u32 s7, s1, 0")
    P("s_load_dwordx4 s[80:83], s[6:7], 0")
    P("s_load_dwordx4 s[84:87], s[6:7], 16")
    P("s_load_dwordx2 s[88:89], s[6:7], 32")
    P("s_load_dwordx2 s[90:91], s[0:1], 96")
    P("s_load_dwordx4 s[96:99], s[0:1], 80")
    P("s_lshr_b32 s4, s2, 3")
    P("s_and_b32 s5, s4, 3")
    P("s_and_b32 s6, s3, 3")
    P("s_lshl_b32 s6, s6, 2")
    P(f"s_add_u32 s{S_H}, s5, s6")
    P(f"s_lshr_b32 s{S_B}, s4, 2")
    vm = []
    P("s_getpc_b64 s[92:93]")
    P("s_and_b32 s92, s92, 0xffffff00")
    if cfg.pf0 == 'full':
        P("s_lshl_b32 s7, s5, 14")
        P("v_lshlrev_b32 v250, 6, v0")
        P("v_add_u32 v250, s7, v250")
        P("v_min_u32 v250, CODE_END_OFF - 64, v250")
        P("global_load_dword v251, v250, s[92:93]")
    else:
        P(f"s_and_b32 s7, s4, {cfg.pf0 - 1}\ns_lshl_b32 s7, s7, 12")
        P("v_lshrrev_b32 v250, 6, v0\nv_lshlrev_b32 v250, 10, v250\nv_and_b32 v251, 15, v0\nv_lshl_add_u32 v250, v251, 6, v250")
        P("v_add_u32 v250, s7, v250")
        P("v_min_u32 v250, CODE_END_OFF - 64, v250")
        P("s_mov_b64 exec, 0xffff\nglobal_load_dword v251, v250, s[92:93]\ns_mov_b64 exec, -1")
    vm.append(('pf', 0))
    RR, PC, SWP, W_, T0, T1, T2, SWK, T3 = range(V_T2, V_T2+9)
    L = V_LANE
    P(f"v_lshrrev_b32 v{W_}, 6, v0")
    P(f"v_and_b32 v{L}, 63, v0")
    P(f"v_readfirstlane_b32 s{S_W}, v{W_}")
    P(f"v_lshrrev_b32 v{RR}, 3, v{L}")
    P(f"v_and_b32 v{PC}, 7, v{L}")
    P(f"v_lshrrev_b32 v{T1}, 1, v{RR}")
    P(f"v_xor_b32 v{SWK}, v{PC}, v{T1}")
    P(f"v_lshlrev_b32 v{SWK}, 4, v{SWK}")
    P(f"s_lshl_b32 s{S_LW4K}, s{S_W}, 12")
    P(f"v_lshl_add_u32 v{T0}, v{W_}, 5, v{RR}")
    P(f"v_mul_u32_u24 v{T0}, 896, v{T0}")
    P(f"v_add_u32 v{T1}, v{T0}, v{SWK}")
    P(f"v_xor_b32 v{T2}, 64, v{T1}")
    for i in range(4): P(f"v_add_u32 v{V_OX+i}, {i*8*896 - 1024*i}, v{T1 if i % 2 == 0 else T2}")
    P(f"v_and_b32 v{T1}, 2, v{RR}")
    P(f"v_xor_b32 v{T1}, v{PC}, v{T1}")
    P(f"v_lshlrev_b32 v{T1}, 4, v{T1}")
    P(f"v_lshl_add_u32 v{T1}, v{W_}, 7, v{T1}")
    P(f"v_lshl_add_u32 v{T1}, v{RR}, 13, v{T1}")
    P(f"v_xor_b32 v{T2}, 64, v{T1}")
    for i in range(4): P(f"v_add_u32 v{V_OWQ+i}, {i*8*8192 - 1024*i}, v{T1 if i % 2 == 0 else T2}")
    P(f"s_mul_i32 s5, s{S_B}, 114688")
    P(f"s_lshl_b32 s6, s{S_H}, 9")
    P(f"s_mov_b32 s{S_X+2}, 114688\ns_mov_b32 s{S_X+3}, 0x20000")
    P(f"s_sub_u32 s{S_WQ+2}, 3670016, s6\ns_mov_b32 s{S_WQ+3}, 0x20000")
    if cfg.rot == 2: P(f"s_xor_b32 s7, s{S_H}, s{S_B}\ns_and_b32 s7, s7, 1\ns_lshl_b32 s7, s7, 2")
    if cfg.rot == 4: P(f"s_add_u32 s7, s{S_H}, s{S_B}\ns_and_b32 s7, s7, 3\ns_lshl_b32 s7, s7, 1")
    if cfg.rot == 3: P(f"s_add_u32 s7, s{S_H}, s{S_B}\ns_and_b32 s7, s7, 3\ns_lshl_b32 s7, s7, 2\ns_lshr_b32 s7, 0x5025, s7\ns_and_b32 s7, s7, 7")
    if cfg.rot == 7: P(f"s_and_b32 s7, s{S_H}, 3\ns_lshl_b32 s7, s7, 1\ns_add_u32 s7, s7, s{S_B}\ns_sub_u32 s94, s7, 7\ns_min_u32 s7, s7, s94")
    if cfg.rot == 23: P(f"s_xor_b32 s7, s{S_H}, s{S_B}\ns_and_b32 s7, s7, 1\ns_mul_i32 s7, s7, 3")
    if cfg.rot: P("s_lshl_b32 s94, s7, 7\ns_lshl_b32 s95, s7, 19")
    if cfg.probe_at < 0:
        P(f"v_and_b32 v246, 1, v{L}\nv_lshrrev_b32 v247, 1, v{L}")
        P(f"v_and_b32 v244, 1, v247\nv_lshlrev_b32 v244, 12, v244\nv_lshl_add_u32 v244, v247, 7, v244\nv_lshl_add_u32 v244, v246, 13, v244")
        P(f"v_lshl_add_u32 v244, v{W_}, 10, v244\nv_add_u32 v244, 0x38000, v244\nv_add_u32 v246, 1, v246")
        P(f"s_lshl_b32 s7, s{S_P}, 3\ns_add_u32 s7, s7, s{S_B}\ns_lshl_b32 s7, s7, 4\ns_add_u32 s7, s7, s{S_H}\ns_lshl_b32 s7, s7, 18")
        P(f"s_mov_b32 s{S_WS+2}, {WGS}\ns_mov_b32 s{S_WS+3}, 0x20000")
    if cfg.pstamp: stamp()
    P("s_waitcnt lgkmcnt(0)")
    if cfg.pstamp: stamp()
    P(f"s_add_u32 s{S_X}, s80, s5\ns_addc_u32 s{S_X+1}, s81, 0")
    P(f"s_add_u32 s{S_WQ}, s86, s6\ns_addc_u32 s{S_WQ+1}, s87, 0")

    ST = {}
    for j in range(7): ST[('x', j)] = (S_X, V_OX, 128*j, cfg.x_flag)
    for s in range(14): ST[('wq', s)] = (S_WQ, V_OWQ, 32*s*8192, cfg.w_flag)
    for s in range(16): ST[('k', s)] = (S_K, V_OK, 32*s*512, cfg.kv_flag)
    for s in range(16): ST[('v', s)] = (S_V, V_OV, 32*s*512, cfg.kv_flag)
    for s in range(14): ST[('wo', s)] = (S_WO, V_OWO, None, cfg.wo_flag)
    events = []
    for s in range(14): events.append(([('x', s//2)] if s % 2 == 0 else []) + [('wq', s)])
    for s in range(16): events.append([('k', s)])
    for s in range(16): events.append(([('wo', s//4)] if s % 4 == 0 else []) + [('v', s)])
    events += [[], []]
    for j in range(2, 7): events.append([('wo', 2*j), ('wo', 2*j+1)])
    order = [s for e in events for s in e]
    for k, e_ in enumerate(cfg.kreq):
        tgt = next((s_ for s_ in order if s_[0] in ('x', 'wq') and [i_ for i_, l_ in enumerate(events) if s_ in l_][0] - cfg.q_ahead > e_), None)
        if tgt is not None:
            order.remove(('k', k)); order.insert(order.index(tgt), ('k', k))
    order = [s_ for s_ in order if s_[0] != 'wo' and not (s_[0] == 'v' and s_[1] in cfg.vreq)]
    vq = sorted(cfg.vreq, key=lambda k_: cfg.vreq[k_])
    woq = sorted(range(14), key=lambda k_: cfg.wo_req[k_] if k_ < len(cfg.wo_req) else 100 + k_)
    slot_of = {}
    free = list(range(cfg.nslots))
    nload = [0]
    ev_of = {s: e for e, l in enumerate(events) for s in l}
    def next_stages(e, maxn):
        g = []; n = 0
        while free and n < maxn:
            s = order[nload[0]] if nload[0] < len(order) else None
            if s is not None:
                if s[0] == 'k' and s[1] < len(cfg.kreq):
                    if e < cfg.kreq[s[1]]: s = None
                elif s[0] in 'kv':
                    dist = sum(1 for e_ in range(e + 1, ev_of[s] + 1) if not (events[e_][-1][0] == 'k' and events[e_][-1][1] in cfg.kst) and not (events[e_][-1][0] == 'v' and events[e_][-1][1] in cfg.vreq))
                    if dist > (cfg.ahead0 if e < cfg.ramp_ev else cfg.ahead + (1 if e in cfg.boost else 0)): s = None
                elif e >= 0 and ev_of[s] - e > (cfg.q_sched[e] if e < len(cfg.q_sched) else cfg.q_ahead): s = None
            if s is not None: nload[0] += 1
            elif vq and e >= cfg.vreq[vq[0]]: s = ('v', vq.pop(0))
            elif woq and e >= (cfg.wo_req[woq[0]] if woq[0] < len(cfg.wo_req) else 44) and (len(free) > 1 or nload[0] >= len(order)): s = ('wo', woq.pop(0))
            else: break
            n += 1
            slot_of[s] = free.pop(0)
            sr, vo, so, f = ST[s]
            if s[0] == 'k' and s[1] in cfg.kst:
                g.append(('V', f"v_add_u32 v{V_KW+1}, {slot_of[s]*16384}, v{V_KW}", s))
                if cfg.w64:
                    for i in range(8): g.append(('W', f"ds_write_b64 v{V_KW+1}, a[{16*s[1]+2*i}:{16*s[1]+2*i+1}] offset:{1024*(i//2) + 8*(i % 2)}", s))
                else:
                    for i in range(4): g.append(('W', f"ds_write_b128 v{V_KW+1}, a[{16*s[1]+4*i}:{16*s[1]+4*i+3}] offset:{1024*i}", s))
                continue
            g.append(('S', f"s_add_u32 m0, s{S_LW4K}, {slot_of[s]*16384}"))
            soff = f"s{S_OFF}"
            if s[0] == 'wo':
                if s[1] % 2 == 0: soff = f"s{ROT + s[1]//2}"
                else: g.append(('S', f"s_add_u32 s{S_OFF}, s{ROT + s[1]//2}, {128*896}"))
            elif cfg.rot and s[0] in ('x', 'wq'):
                rr, tot = (94, 7*128) if s[0] == 'x' else (95, 14*32*8192)
                if so == 0: soff = f"s{rr}"
                else:
                    g.append(('S', f"s_add_u32 s{S_OFF}, s{rr}, {so}"))
                    g.append(('S', f"s_sub_u32 s100, s{S_OFF}, {tot}"))
                    g.append(('S', f"s_min_u32 s{S_OFF}, s{S_OFF}, s100"))
            elif so == 0: soff = "0"
            else: g.append(('S', f"s_mov_b32 s{S_OFF}, {so}"))
            for i in range(4):
                g.append(('D', f"buffer_load_dwordx4 v{vo+i}, s[{sr}:{sr+3}], {soff} offen offset:{1024*i}{fl(f)} lds", s))
        return g
    def emit_dma(x):
        if x[0] == 'S': P(x[1])
        elif x[0] == 'V':
            idx = max(k for k, tg in enumerate(vm) if tg == x[2])
            if idx > waited[0]: P(f"s_waitcnt vmcnt({min(63, len(vm)-1-idx)})")
            P(x[1])
        elif x[0] == 'W':
            P(x[1]); lds.append(10**6); wpos[x[2]] = len(lds) - 1
        else:
            if not cfg.no_dma: P(x[1])
            vm.append(x[2])
    lds = []; wpos = {}; waited = [-1]; ldone = [-1]
    def early_probe():
        P(f"s_add_u32 s{S_WS}, s90, s7\ns_addc_u32 s{S_WS+1}, s91, 0")
        P(f"s_mov_b64 exec, {(1 << (2*len(cfg.races))) - 1}\nbuffer_store_dword v246, v244, s[{S_WS}:{S_WS+3}], 0 offen sc0 sc1\ns_mov_b64 exec, -1")
        vm.append(('pr', 0))
    if cfg.probe_at == -1: early_probe()
    for x in next_stages(-1, 1): emit_dma(x)
    if cfg.probe_at == -2: early_probe()
    for x in next_stages(-1, cfg.pro_split - 1): emit_dma(x)
    if cfg.pstamp: stamp()
    P(f"v_lshrrev_b32 v{T2}, 4, v{L}")
    P(f"v_and_b32 v{T3}, 15, v{L}")
    P(f"v_lshrrev_b32 v244, 1, v{T3}")
    P(f"v_xor_b32 v{T1}, v244, v{T2}")
    P(f"v_lshlrev_b32 v{T1}, 4, v{T1}")
    P(f"v_lshl_add_u32 v{T1}, v{T3}, 7, v{T1}")
    P(f"v_lshl_add_u32 v{V_AX}, v{W_}, 12, v{T1}")
    P(f"v_xor_b32 v{V_AX+1}, 64, v{V_AX}")
    P(f"v_lshrrev_b32 v{T1}, 1, v{T2}")
    P(f"v_xor_b32 v{T1}, v{T1}, v244")
    P(f"v_lshlrev_b32 v{T1}, 4, v{T1}")
    P(f"v_lshl_add_u32 v{T1}, v{T3}, 7, v{T1}")
    P(f"v_and_b32 v{T3}, 1, v{T2}")
    P(f"v_lshl_add_u32 v{V_AK}, v{T3}, 3, v{T1}")
    for j in range(1, 4): P(f"v_xor_b32 v{V_AK+j}, {32*j}, v{V_AK}")
    if cfg.k128:
        P(f"v_and_b32 v{V_AK}, 0xfff, v{V_AX}\nv_xor_b32 v{V_AK+1}, 64, v{V_AK}")
    P(f"v_bfe_u32 v244, v{L}, 2, 2")
    P(f"v_lshl_add_u32 v{T1}, v{T2}, 3, v244")
    P(f"v_lshlrev_b32 v{T1}, 7, v{T1}")
    P(f"v_lshrrev_b32 v244, 1, v244")
    P(f"v_lshl_add_u32 v244, v{T3}, 1, v244")
    P(f"v_lshl_add_u32 v{T1}, v244, 5, v{T1}")
    P(f"v_and_b32 v244, 3, v{L}")
    P(f"v_lshl_add_u32 v{V_AT}, v244, 3, v{T1}")
    for j in range(1, 4): P(f"v_xor_b32 v{V_AT+j}, {32*j}, v{V_AT}")
    P(f"v_lshlrev_b32 v{V_G4}, 9, v{T2}")
    P(f"v_lshl_add_u32 v{T1}, v{W_}, 7, v{SWK}")
    P(f"v_lshl_add_u32 v{T1}, v{RR}, 9, v{T1}")
    P(f"v_xor_b32 v{T2}, 64, v{T1}")
    for i in range(4): P(f"v_add_u32 v{V_OK+i}, {i*8*512 - 1024*i}, v{T1 if i % 2 == 0 else T2}")
    P(f"v_and_b32 v{T1}, 6, v{RR}")
    P(f"v_xor_b32 v{SWP}, v{PC}, v{T1}")
    P(f"v_lshlrev_b32 v{SWP}, 4, v{SWP}")
    P(f"v_lshl_add_u32 v{T1}, v{W_}, 7, v{SWP}")
    P(f"v_lshl_add_u32 v{T1}, v{RR}, 9, v{T1}")
    for i in range(4): P(f"v_add_u32 v{V_OV+i}, {i*8*512 - 1024*i}, v{T1}")
    P(f"v_add_u32 v{T1}, v{T0}, v{SWP}")
    for i in range(4): P(f"v_add_u32 v{V_OWO+i}, {i*8*896 - 1024*i}, v{T1}")
    P(f"v_mov_b32 v{V_M}, 0xff800000\nv_mov_b32 v{V_M+1}, 0xff800000")
    P(f"v_lshlrev_b32 v{V_KW}, 4, v{L}\nv_add_u32 v{V_KW}, s{S_LW4K}, v{V_KW}")
    P(f"s_mov_b32 s{S_C}, {f32hex(1.4426950408889634/16.0)}")
    P(f"s_or_b32 s{S_LEAD}, s{S_H}, s{S_W}")
    P(f"s_lshl_b32 s5, s{S_B}, 4\ns_add_u32 s5, s5, s{S_H}\ns_lshl_b32 s6, s5, 18")
    for x in srd(S_K, 82, "s6", 262144) + srd(S_V, 84, "s6", 262144): P(x)
    P(f"s_mul_i32 s6, s{S_H}, 229376")
    for x in srd(S_WO, 88, "s6", 229376): P(x)
    P(f"s_lshl_b32 s6, s{S_P}, 7\ns_add_u32 s5, s5, s6\ns_mul_i32 s5, s5, {WGS}")
    for x in srd(S_WS, 90, "s5", WGS): P(x)
    P(f"s_lshl_b32 s4, s{S_P}, 3\ns_add_u32 s4, s4, s{S_B}")
    if cfg.lflag:
        P(f"s_lshl_b32 s5, s4, 22\ns_add_u32 s5, s5, 0x3c000")
        for x in srd(S_FL, 90, "s5", 8192 + 512): P(x)
    else:
        P(f"s_lshl_b32 s5, s4, 9\ns_add_u32 s5, s5, {FOFF}")
        for x in srd(S_FL, 90, "s5", 512): P(x)
    P(f"s_lshl_b32 s5, s4, 2")
    for x in srd(S_DB, 98, "s5", 4): P(x)
    if cfg.tlb == 's':
        for b_, o_ in ((S_K, 0), (S_V, 0), (S_WO, 0), (S_WO, 229312), (S_DB, 0), (96, 0)):
            P(f"s_load_dword s{S_T+3}, s[{b_}:{b_+1}], {o_}")
    if cfg.tlb == 'v':
        P("s_mov_b64 exec, 1\nv_mov_b32 v252, 0")
        for b_ in (S_K, S_V, S_WO):
            P(f"buffer_load_dword v255, v252, s[{b_}:{b_+3}], 0 offen"); vm.append(('tlb', 0))
        P("s_mov_b64 exec, -1")
    P(f"s_cmp_eq_u32 s{S_B}, 7\ns_cselect_b32 s5, 3, s{S_B}\ns_lshl_b32 s{ROT}, s5, 7")
    for j in range(1, 7):
        P(f"s_add_u32 s{ROT+j}, s{ROT+j-1}, 128\ns_cmp_eq_u32 s{ROT+j}, 896\ns_cselect_b32 s{ROT+j}, 0, s{ROT+j}")
    if cfg.fullp:
        P(f"v_bfe_u32 v246, v{L}, 4, 1\nv_lshrrev_b32 v247, 5, v{L}\nv_mul_u32_u24 v244, 4224, v247\nv_lshl_add_u32 v244, v246, 13, v244")
        P(f"v_and_b32 v247, 15, v{L}\nv_lshl_add_u32 v244, v247, 3, v244")
    else:
        P(f"v_and_b32 v246, 1, v{L}\nv_lshrrev_b32 v247, 1, v{L}")
        P(f"v_and_b32 v244, 1, v247\nv_lshlrev_b32 v244, 12, v244\nv_lshl_add_u32 v244, v247, 7, v244\nv_lshl_add_u32 v244, v246, 13, v244")
    P(f"s_lshl_b32 s5, s{S_W}, 10\ns_add_u32 s5, s5, 0x38000")
    P(f"v_add_u32 v246, 1, v246")
    P(f"s_add_u32 s{RB}, s{S_WS}, s5\ns_addc_u32 s{RB+1}, s{S_WS+1}, 0")
    P(f"v_add_u32 v244, s5, v244")
    probe_st = [f"s_mov_b64 exec, {(1 << (2*len(cfg.races))) - 1}", f"buffer_store_dword v246, v244, s[{S_WS}:{S_WS+3}], 0 offen sc0 sc1", "s_mov_b64 exec, -1"]
    if cfg.fullp:
        assert len(cfg.races) == 2
        P("v_mov_b32 v247, v246")
        probe_st = [f"buffer_store_dwordx2 v[246:247], v244, s[{S_WS}:{S_WS+3}], 0 offen sc0 sc1"]
    P(f"s_mov_b32 s{RB+3}, 0")
    if cfg.brace:
        RC = RA[0][0] + (RA[0][0] & 1)
        P(f"s_and_b32 s5, s{S_W}, 1\ns_lshl_b32 s{S_T}, s5, 13\ns_xor_b32 s{S_T+1}, s{S_T}, 0x2000")
        P(f"s_load_dword s7, s[{RB}:{RB+1}], 0x300")
    P(f"v_lshlrev_b32 v{T1}, 3, v{L}")
    P(f"v_mov_b32 v248, 0\nv_mov_b32 v249, 0")
    P(f"s_cmp_lg_u32 s{S_LEAD}, 0\ns_cbranch_scc1 L_nz")
    P.slow(True)
    P(f"buffer_store_dwordx2 v[248:249], v{T1}, s[{S_FL}:{S_FL+3}], 0 offen sc0 sc1")
    if cfg.lflag: P(f"s_movk_i32 s5, 0x2000\nbuffer_store_dwordx2 v[248:249], v{T1}, s[{S_FL}:{S_FL+3}], s5 offen sc0 sc1")
    P.slow(False)
    P("L_nz:")
    zero_mark = len(vm)
    if cfg.pstamp: stamp()
    for x in next_stages(-1, cfg.npro - cfg.pro_split): emit_dma(x)
    stamp()
    for k_ in range(cfg.brace):
        P("s_waitcnt lgkmcnt(0)")
        if k_: P(f"s_add_u32 s{S_T}, s{S_T}, 0x1080\ns_add_u32 s{S_T+1}, s{S_T+1}, 0x1080")
        a_, b_ = f"s_load_dword s7, s[{RB}:{RB+1}], s{S_T}", f"s_load_dwordx2 s[{RC}:{RC+1}], s[{RB}:{RB+1}], s{S_T+1}"
        P(a_ + "\n" + b_ if (k_ % 2 == 0) else b_ + "\n" + a_)
        P("s_waitcnt lgkmcnt(2)")
        P("s_nop 1\ns_getreg_b32 s6, hwreg(HW_REG_IB_STS, 8, 4)")
        if cfg.dump_score: P(f"s_lshl_b32 s{RB+3}, s{RB+3}, 4\ns_or_b32 s{RB+3}, s{RB+3}, s6")
        else: P(f"s_cmp_eq_u32 s6, 2\ns_addc_u32 s{RB+3}, s{RB+3}, 0\ns_cmp_eq_u32 s6, 1\ns_subb_u32 s{RB+3}, s{RB+3}, 0")
    if cfg.brace and not cfg.dump_score:
        P(f"s_sub_u32 s6, 0, s{RB+3}\ns_bitcmp1_b32 s{S_W}, 0\ns_cselect_b32 s{RB+3}, s6, s{RB+3}")

    items = []
    fifo = []
    def item(stage, reads, B, D, first, A=None):
        items.append(dict(stage=stage, ev=ev_of[stage], reads=reads, B=B, D=D, first=first, A=A, pre=[], mem=[], ops=[]))
    def forced(lst, start, n):
        k = len(lst)
        for j in range(n):
            for x in lst[j*k//n:(j+1)*k//n]: fifo.append((start + j, start + j, x))
    def window(lst, rel, dl):
        for x in lst:
            for y in x.split('\n') if not x.startswith('s_add_u32 s') or '\ns_addc' not in x else [x]:
                fifo.append((rel, dl, y))
    def acc(f, base, mt): return [R(f, base + 16*(mt//2) + 8*u + 4*(mt % 2), 4) for u in range(2)]
    def frag(base, a): return [R('v', base + 16*a + 8*u, 4) for u in range(2)]
    for s in range(14):
        xb = V_QA + 16*((s//2) % 2) + 8*(s % 2)
        for mt in range(16):
            rel = (mt//4)*4096
            item(('wq', s), [('T', mt % 4, rel), ('T', mt % 4, rel + 512)], [R('v', xb, 4), R('v', xb+4, 4)], acc('v', V_X, mt), s == 0)
    if cfg.races and cfg.probe_at >= 0: items[cfg.probe_at]['mem'] = probe_st
    for t_, i0_ in cfg.kst.items():
        for i in range(4):
            it_ = i0_ + cfg.kst_gap*i
            while items[it_]['mem'] or it_ % 16 == 9: it_ += 1
            items[it_]['mem'] = [f"s_mov_b32 s{S_T+1}, {32*t_*512}", (f"buffer_load_dwordx4 a[{16*t_+4*i}:{16*t_+4*i+3}], v{V_OK+i}, s[{S_K}:{S_K+3}], s{S_T+1} offen offset:{1024*i}{fl(cfg.kv_flag)}", ('k', t_))]
    for k, t_ in enumerate(cfg.wopf):
        pre_ = [f"s_mul_i32 s{S_T+2}, s{S_B}, 28672", f"s_mul_i32 s{S_T+3}, s{S_W}, 7168", f"s_add_u32 s{S_T+2}, s{S_T+2}, s{S_T+3}", f"v_lshlrev_b32 v253, 4, v{V_LANE}"] if k == 0 else [f"s_add_u32 s{S_T+2}, s{S_T+2}, 1024"]
        while items[t_]['mem'] or t_ % 16 == 9: t_ += 1
        items[t_]['mem'] = pre_ + [f"buffer_load_dwordx4 a[0:3], v253, s[{S_WO}:{S_WO+3}], s{S_T+2} offen"]
    for k, r0 in enumerate(cfg.races):
        a_, b_ = RA[k]
        off = (k & 1)*4096 + k*128
        items[r0]['race'] = [f"s_mov_b32 s{a_}, 0", f"s_mov_b32 s{b_}, 0", f"s_mov_b32 s{RB+2}, 0"]
        first, second = ((a_, off), (b_, off + 8192)) if k % 2 == 0 else ((b_, off + 8192), (a_, off))
        items[r0+1]['race'] = [f"s_load_dword s{first[0]}, s[{RB}:{RB+1}], {first[1]}", f"s_load_dword s{second[0]}, s[{RB}:{RB+1}], {second[1]}"]
        for t_ in range(r0 + cfg.race_beg, r0 + cfg.race_len):
            items[t_]['race'] = [f"s_or_b32 s6, s{a_}, s{b_}", f"s_cmp_eq_u32 s{RB+2}, 0", f"s_cselect_b32 s{RB+2}, s6, s{RB+2}"]
        if cfg.dump_score: items[r0 + cfg.race_len]['race'] = [f"s_lshl_b32 s{RB+3}, s{RB+3}, 4", f"s_or_b32 s{RB+3}, s{RB+3}, s{RB+2}"]
        else: items[r0 + cfg.race_len]['race'] = [f"s_cmp_eq_u32 s{RB+2}, 1", f"s_addc_u32 s{RB+3}, s{RB+3}, 0", f"s_cmp_eq_u32 s{RB+2}, 2", f"s_subb_u32 s{RB+3}, s{RB+3}, 0"]
    def pack(a):
        o = []
        for u in range(2):
            b = V_X + 16*a + 8*u
            o += [f"v_cvt_pk_bf16_f32 v{b+i}, v{b+2*i}, v{b+2*i+1}" for i in range(4)]
        return o
    def maxcode(tl):
        o = []
        tb = V_T2
        for i in range(8):
            o.append(f"v_accvgpr_read_b32 v{tb+2*i}, a{16*tl+2*i}")
            o.append(f"v_accvgpr_read_b32 v{tb+2*i+1}, a{16*tl+2*i+1}")
            if i > 0: o.append(f"v_max3_f32 v{V_M+(i-1)//4}, v{tb+2*i-2}, v{tb+2*i-1}, v{V_M+(i-1)//4}")
        o.append(f"v_max3_f32 v{V_M+1}, v{tb+14}, v{tb+15}, v{V_M+1}")
        return o
    qend = len(items)
    for tl in range(16):
        for a in range(8):
            for T in range(2):
                rel = (a//2)*4096 + T*2048
                item(('k', tl), [('K', a % 2, rel)] if cfg.k128 else [('K', 2*(a % 2), rel), ('K', 2*(a % 2) + 1, rel)], frag(V_X, a), acc('a', 16*tl, T), a == 0)
    def packq(a):
        o = pack(a)
        if cfg.k128:
            for sw in ("v_permlane32_swap_b32", "v_permlane16_swap_b32"):
                for u in range(2):
                    b = V_X + 16*a + 8*u
                    o += [f"{sw} v{b}, v{b+2}", f"{sw} v{b+1}, v{b+3}"]
        return o
    for a in range(8): window(packq(a), qend - 16 + 2*a + 3, qend + 2*a - 1)
    G, Ta, Tb = 245, 246, 247
    misc1 = [f"v_sub_u32 v{V_AT+j}, v{V_AT+j}, v{V_G4}" for j in range(4)] + [
        f"s_lshr_b32 s5, s{S_W}, 1\ns_lshl_b32 s5, s5, 14\ns_and_b32 s6, s{S_W}, 1\ns_lshl_b32 s6, s6, 12\ns_add_u32 s5, s5, s6",
        f"v_lshlrev_b32 v{V_SO}, 4, v{L}", f"v_and_b32 v{V_SO}, 0x70, v{V_SO}",
        f"v_lshrrev_b32 v{G}, 4, v{L}", f"v_lshl_add_u32 v{V_SO}, v{G}, 7, v{V_SO}",
        f"v_bfe_u32 v{Ta}, v{L}, 3, 1", f"v_lshl_add_u32 v{V_SO}, v{Ta}, 10, v{V_SO}", f"v_add_u32 v{V_SO}, s5, v{V_SO}",
        f"s_lshl_b32 s5, s{S_W}, 7", f"s_lshl_b32 s6, s{S_H}, 2", "s_add_u32 s5, s5, s6", f"v_mov_b32 v{V_FO}, s5",
        f"s_lshr_b32 s5, s{S_H}, 2", "s_lshl_b32 s5, s5, 7", f"v_and_b32 v{V_VF}, 15, v{L}", f"v_lshlrev_b32 v{V_VF}, 2, v{V_VF}", f"v_add_u32 v{V_VF}, s5, v{V_VF}",
        f"s_mul_i32 s5, s4, {16*WGS}"] + srd(S_RD, 90, "s5", 16*WGS) + [
        f"s_mov_b32 s{S_OUT}, s96", f"s_mov_b32 s{S_OUT+1}, s97", f"s_mov_b32 s{S_OUT+2}, 1835008", f"s_mov_b32 s{S_OUT+3}, 0x20000",
        f"s_mov_b32 s3, {cfg.spin_max}"] + [f"v_mov_b32 v{V_L+i}, 0" for i in range(4)]
    misc2 = [
        f"s_lshr_b32 s5, s{S_H}, 3\ns_lshl_b32 s5, s5, 14\ns_bfe_u32 s6, s{S_H}, 0x10002\ns_lshl_b32 s6, s6, 12\ns_add_u32 s5, s5, s6", f"s_and_b32 s6, s{S_H}, 3", "s_lshl_b32 s6, s6, 10", "s_add_u32 s5, s5, s6",
        f"s_lshl_b32 s6, s{S_W}, 8", "s_add_u32 s5, s5, s6", f"s_mov_b32 s6, {WGS}",
        f"v_mul_lo_u32 v{V_VR}, v{G}, s6", f"v_lshl_add_u32 v{V_VR}, v{Ta}, 7, v{V_VR}", f"v_and_b32 v{Tb}, 7, v{L}",
        f"v_lshl_add_u32 v{V_VR}, v{Tb}, 4, v{V_VR}", f"v_add_u32 v{V_VR}, s5, v{V_VR}",
        f"s_lshl_b32 s5, s{S_B}, 7", f"s_lshl_b32 s6, s{S_H}, 3", "s_add_u32 s5, s5, s6", "s_mul_i32 s5, s5, 1792",
        f"s_mul_i32 s6, s{S_P}, 896", "s_add_u32 s5, s5, s6", f"s_lshr_b32 s6, s{S_W}, 1", "s_lshl_b32 s6, s6, 6", "s_add_u32 s5, s5, s6",
        f"s_and_b32 s6, s{S_W}, 1", "s_lshl_b32 s6, s6, 4", "s_add_u32 s5, s5, s6",
        f"v_mul_u32_u24 v{V_VO}, 1792, v{Tb}", f"v_lshl_add_u32 v{V_VO}, v{Ta}, 3, v{V_VO}", f"v_and_b32 v{Ta}, 1, v{G}",
        f"v_lshl_add_u32 v{V_VO}, v{Ta}, 5, v{V_VO}", f"v_add_u32 v{V_VO}, s5, v{V_VO}"]
    for tl in range(1, 16):
        base = qend + 16*tl
        if cfg.swin:
            window(maxcode(tl-1), base + 2, base + (17 if tl < 15 else 13))
            if 1 <= tl <= 5:
                n1 = len(misc1); window(misc1[(tl-1)*n1//5:tl*n1//5], base + 2, base + 17)
            m2t = 13 if (14 in cfg.kst or 15 in cfg.kst) else 14
            if tl == m2t: window(misc2[:13], base + 2, base + 17)
            if tl == m2t + 1: window(misc2[13:], base + 2, base + (17 if tl < 15 else 13))
        else:
            forced(maxcode(tl-1), base + 2, 12)
            if tl == 1: forced(misc1[:22], base + 14, 2)
            if tl == 2: forced(misc1[22:], base + 14, 2)
            if tl == 14: forced(misc2, base + 14, 2)
        if tl == 3 and cfg.pool: items[base + 14]['ldsw'] = True
        if tl == 5 and cfg.pool: items[base + 14]['ldsr'] = base + 16 + 10
        if tl == 6:
            pol = []
            if cfg.pool: pol += ["v_add_u32 v252, v252, v253", "v_add3_u32 v252, v252, v254, v255", f"v_readfirstlane_b32 s{RB+3}, v252"]
            pol += [(f"s_lshl_b32 s6, s{RB+3}, 1\ns_and_b32 s{RB+2}, s{S_W}, 1\ns_sub_u32 s6, s6, s{RB+2}\ns_lshr_b32 s{RB+2}, s6, 31" if cfg.force is None else
                     f"s_lshr_b32 s6, s{S_H}, 3\ns_xor_b32 s6, s6, s{S_P}\ns_xor_b32 s{RB+2}, s6, {cfg.force}"),
                    f"s_lshl_b32 s{RB+2}, s{RB+2}, 13", f"v_add_u32 v{V_SO}, s{RB+2}, v{V_SO}"]
            if cfg.swin: window(pol, base + 12, base + 17)
            else: forced(pol, base + 14, 2)
    send = len(items)
    def softmax(tl):
        pb = V_QA + 8*(tl % 2); tb = V_QA + 16
        e = []
        for i in range(16):
            u = i // 8
            e.append((i + 0, 0, f"v_accvgpr_read_b32 v{tb+i}, a{16*tl+i}"))
            e.append((i + 1, 1, f"v_fma_f32 v{tb+i}, v{tb+i}, s{S_C}, -v{V_MC+u}"))
            e.append((i + 2, 2, f"v_exp_f32 v{tb+i}, v{tb+i}"))
            if not cfg.ones: e.append((i + 4, 3, f"v_add_f32 v{V_L+2*u+i%2}, v{V_L+2*u+i%2}, v{tb+i}"))
            if i % 2 == 1: e.append((i + 4, 4, f"v_cvt_pk_bf16_f32 v{pb+i//2}, v{tb+i-1}, v{tb+i}"))
        e.sort(key=lambda x: (x[0], -x[1]))
        return [x[2] for x in e]
    def xreduce(r0, r1, op):
        a, b = V_T2, V_T2 + 1
        o = []
        for sw in ("v_permlane32_swap_b32", "v_permlane16_swap_b32"):
            o += [f"v_mov_b32 v{a}, v{r0}", f"v_mov_b32 v{b}, v{r1}", f"{sw} v{a}, v{r0}", f"{sw} v{b}, v{r1}",
                  f"{op} v{r0}, v{r0}, v{a}", f"{op} v{r1}, v{r1}, v{b}"]
        return o
    if cfg.ones: forced([f"v_mov_b32 v{V_ONE+i}, 0x3f803f80" for i in range(4)], send - 2, 2)
    pvbase = []
    pre = maxcode(15) + xreduce(V_M, V_M+1, "v_max_f32") + [f"v_mul_f32 v{V_MC+u}, s{S_C}, v{V_M+u}" for u in range(2)] + softmax(0)
    for tl in range(16):
        base = len(items)
        pvbase.append(base)
        pb = V_QA + 8*(tl % 2)
        Bp = [R('v', pb, 4), R('v', pb+4, 4)]
        if cfg.ones: item(('v', tl), [], Bp, [R('v', V_SUM, 4), R('v', V_SUM+4, 4)], tl == 0, A=R('v', V_ONE, 4))
        for mt in range(16):
            rel = (mt//4)*4096
            item(('v', tl), [('T', mt % 4, rel), ('T', mt % 4, rel + 2048)], Bp, acc('v', V_X, mt), tl == 0)
        if tl == 0: items[base]['pre'] = pre
        if tl == 8: items[base+2]['mem'] = [f"v_mov_b32 v{V_RDY}, 0", f"buffer_load_dword v{V_RDY}, v{V_RDY}, s[{S_DB}:{S_DB+3}], 0 offen"]
        if tl == cfg.code_pf2:
            items[base+5]['mem'] = [f"s_lshl_b32 s5, s{S_W}, 12", f"s_add_u32 s5, s5, CODE_END_OFF - 16384", f"v_lshlrev_b32 v{V_T2+2}, 6, v{L}",
                                    f"v_add_u32 v{V_T2+2}, s5, v{V_T2+2}", f"global_load_dword v{V_T2+2}, v{V_T2+2}, s[92:93]"]
        if tl < 15: forced(softmax(tl+1), base, len(items) - base)
    pvend = len(items)
    outbase = pvend
    if cfg.ones: fin = [f"v_rcp_f32 v{V_L+1}, v{V_SUM}", f"v_rcp_f32 v{V_L+3}, v{V_SUM+4}"]
    else: fin = [f"v_add_f32 v{V_L}, v{V_L}, v{V_L+1}", f"v_add_f32 v{V_L+2}, v{V_L+2}, v{V_L+3}"] + xreduce(V_L, V_L+2, "v_add_f32") + \
          [f"v_rcp_f32 v{V_L+1}, v{V_L}", f"v_rcp_f32 v{V_L+3}, v{V_L+2}"]
    def norm(a):
        o = []
        for u in range(2):
            b = V_X + 16*a + 8*u
            for i in range(4):
                o += [f"v_mul_f32 v{b+2*i}, v{b+2*i}, v{V_L+1+2*u}", f"v_mul_f32 v{b+2*i+1}, v{b+2*i+1}, v{V_L+1+2*u}", f"v_cvt_pk_bf16_f32 v{b+i}, v{b+2*i}, v{b+2*i+1}"]
        return o
    window(fin, pvend - 15, pvend - 2)
    user = {}
    seqall = []
    for j in range(7):
        if j >= 1: seqall += [(j, a, 2*b + t) for b in range(2) for a in range(8) for t in range(2)]
        else: seqall += [(j, a, nt) for a in range(8) for nt in range(4)]
    if cfg.prenorm:
        km = cfg.kmerge
        seqall = [(j, a, nt) for a in range(km) for j in range(2) for nt in range(4)] + [(0, a, nt) for a in range(km, 8) for nt in range(4)] + [(1, a, 2*b + t) for b in range(2) for a in range(km, 8) for t in range(2)] + seqall[64:]
    for j, a, nt in seqall:
        ab = V_QA if j % 2 == 0 else V_T2
        rel = (a % 4)*4096
        if j < 2:
            fi = 16*(2*j + a//4) + 4*(a % 4) + nt
            item(('v', 15), [], frag(V_X, a), acc('v', ab, nt), a == 0, A=R('a', 4*fi, 4))
            user[fi] = len(items) - 1
        else:
            item(('wo', 2*j + a//4), [('T', nt, rel), ('T', nt, rel + 2048)], frag(V_X, a), acc('v', ab, nt), a == 0)
    done_at = {}
    for n_, (j, a, nt) in enumerate(seqall): done_at[(j, nt//2)] = n_
    first_need = {}
    for n_, (j, a, nt) in enumerate(seqall): first_need.setdefault(a, n_)
    first_use = {}
    for n_, (j, a, nt) in enumerate(seqall): first_use.setdefault((j, nt//2), n_)
    for a in range(8): window(norm(a) if cfg.prenorm else pack(a), pvend - 16 + 2*a + 3, outbase + first_need[a] - 1)
    for tl in range(16):
        for n_ in range(8):
            fi = 4*tl + n_//2
            items[pvbase[tl] + 1 + 2*n_].setdefault('pr', []).append((fi, n_ % 2))
    for k_, t_ in enumerate(cfg.pf3):
        while items[t_]['mem']: t_ += 1
        tv = V_RDY if t_ < send else V_T2 + 2
        items[t_]['mem'] = [f"L_pf{k_}:", f"s_bfe_u32 s7, s2, 0x20003", f"s_lshl_b32 s7, s7, 2", f"s_add_u32 s7, s7, s{S_W}", f"s_lshl_b32 s7, s7, 10",
                            f"s_add_u32 s7, s7, L_pf{k_} - {KNAME} + {cfg.pf_off}", f"v_lshlrev_b32 v{tv}, 6, v{L}", f"v_add_u32 v{tv}, s7, v{tv}",
                            f"v_min_u32 v{tv}, CODE_END_OFF - 64, v{tv}",
                            "s_mov_b64 exec, 0xffff", f"global_load_dword v{tv}, v{tv}, s[92:93]", "s_mov_b64 exec, -1"]
    N = len(items)
    def sdst(j, q): return V_X + 8*((4*j + q) % 16) + 4
    def cvts(j, q):
        b = (V_QA if j % 2 == 0 else V_T2) + 8*q
        d = sdst(j, q)
        o = []
        for i in range(4):
            if not cfg.prenorm: o += [f"v_mul_f32 v{b+2*i}, v{b+2*i}, v{V_L+1+2*(q % 2)}", f"v_mul_f32 v{b+2*i+1}, v{b+2*i+1}, v{V_L+1+2*(q % 2)}"]
            o.append(f"v_cvt_pk_bf16_f32 v{d+i}, v{b+2*i}, v{b+2*i+1}")
        return o
    lasts = []
    for c in cfg.groups: lasts.append((lasts[-1] if lasts else -1) + c)
    sched = []
    pos = cfg.st_start
    tS = {}
    sq = [(j, q) for j in range(7) for q in range(4)][:-2]
    tail = []
    busy = set()
    vt = 0
    for (j, q) in sq:
        rel = done_at[(j, q//2)] + 3
        vt = max(vt, rel) + cfg.cw
        pos = max(pos, vt)
        while pos % 32 == 25: pos += 1
        dl = min(pos - 1, first_use.get((j+2, q//2), 999) - 1, 223)
        window(cvts(j, q), outbase + rel, outbase + dl)
        tS[(j, q)] = pos
        if (4*j + q) >= 16: assert tS[((4*j+q-16)//4, q)] < rel
        if pos < 224: items[outbase + pos]['ops'].append(('S', j, q))
        else: tail.append(('S', j, q))
        pos += cfg.st_gap
    tail += [('X', 6, 2), ('X', 6, 3)]
    for j in lasts[:-1]:
        t_ = tS[(j, 3)] + cfg.t_flag
        while t_ < 224 and (t_ % 32 == 25 or items[outbase + t_]['ops']): t_ += 1
        if t_ < 224: items[outbase + t_]['ops'].append(('F', j))
        else: tail.append(('F', j))
    npoll = {lasts[0]: 1}
    j0 = 0
    rest = lasts
    if cfg.instream:
        tp, tc, gp = cfg.instream
        def put(t_, op):
            while t_ % 32 == 25 or items[outbase + t_]['ops']: t_ += 1
            items[outbase + t_]['ops'].append(op); return t_
        put(tp, ('P', lasts[0], 0)); t_ = put(tc, ('C', lasts[0]))
        for j in range(lasts[0] + 1):
            for i in range(4): t_ = put(t_ + gp, ('L', j, i))
        j0 = lasts[0] + 1; rest = lasts[1:]; npoll[rest[0]] = 1
    if len(rest) == 1: tail += [('F', 6), ('P', 6, 0)]
    elif cfg.early_a is None: tail += [('P', rest[0], 0), ('F', 6)]
    else: items[outbase + cfg.t_pa]['ops'].append(('P', rest[0], 0))
    for k, j1 in enumerate(rest):
        ld = [('L', j, i) for j in range(j0, j1 + 1) for i in range(4)]
        tail.append(('C', j1))
        if k + 1 < len(rest):
            ks = sorted({min(len(ld), x) for x in cfg.keeps}, reverse=True)
            npoll[rest[k+1]] = len(ks)
            for n_, op in enumerate(ld + [None]):
                if k == 0 and cfg.early_a is not None and n_ == cfg.early_a: tail.append(('F', 6))
                if len(ld) - n_ in ks: tail.append(('P', rest[k+1], ks.index(len(ld) - n_)))
                if op: tail.append(op)
        else: tail += ld
        j0 = j1 + 1

    def vwait(tag):
        idx = vm.index(tag)
        P(f"s_waitcnt vmcnt({min(63, len(vm)-1-idx)})")
    def emit_op(op):
        k = op[0]; j = op[1]
        if k in 'SX':
            q = op[2]
            if k == 'X':
                for x in cvts(j, q): P(x)
            if q == 0: P(f"s_lshl_b32 s{S_T}, s{ROT+j}, {PSH}")
            b = sdst(j, q)
            P(f"buffer_store_dwordx4 v[{b}:{b+3}], v{V_SO}, s[{S_WS}:{S_WS+3}], s{S_T} offen offset:{(q % 2)*2048 + (q//2)*512}{fl(cfg.st_flag)}")
            vm.append(('S', j, q))
        elif k == 'F':
            if j == lasts[0]:
                P("L_rdy:")
                P(f"v_cmp_ne_u32 vcc, 0, v{V_RDY}")
                P("s_cbranch_vccnz L_rdy_ok")
                P.slow(True)
                P(f"v_mov_b32 v{V_RDY}, 0")
                P(f"buffer_load_dword v{V_RDY}, v{V_RDY}, s[{S_DB}:{S_DB+3}], 0 offen sc0 sc1")
                P("s_waitcnt vmcnt(0)")
                P("s_sub_u32 s3, s3, 1\ns_cmp_gt_i32 s3, 0\ns_cbranch_scc1 L_rdy")
                P.slow(False)
                P("L_rdy_ok:")
                if cfg.anchor is not None: P("s_mov_b64 vcc, 0")
                if cfg.lflag: P(f"v_and_b32 v{V_RDY}, 0x2000, v{V_RDY}\nv_add_u32 v{V_FO}, v{V_FO}, v{V_RDY}\nv_add_u32 v{V_VF}, v{V_VF}, v{V_RDY}")
            P(f"s_add_u32 s6, s{RB+2}, {j+1}\nv_mov_b32 v{V_FV}, s6")
            vwait(('S', j, 3))
            if j == 6: stamp()
            P("s_mov_b64 exec, 1")
            P(f"buffer_store_dword v{V_FV}, v{V_FO}, s[{S_FL}:{S_FL+3}], 0 offen sc0 sc1")
            P("s_mov_b64 exec, -1")
            vm.append(op)
        elif k == 'P':
            pv = V_PV if op[2] == npoll[j] - 1 else V_OV + op[2]
            P(f"buffer_load_dword v{pv}, v{V_VF}, s[{S_FL}:{S_FL+3}], 0 offen sc0 sc1")
            vm.append(op)
        elif k == 'C':
            for r_ in range(npoll[j] - 1):
                vwait(('P', j, r_))
                P(f"v_and_b32 v{V_M}, 15, v{V_OV + r_}")
                P(f"v_cmp_gt_u32 vcc, {j+1}, v{V_M}")
                P(f"s_cbranch_vccz L_ok{j}")
                P.slow(True)
            vwait(('P', j, npoll[j] - 1))
            P(f"L_chk{j}:")
            P(f"v_and_b32 v{V_M}, 15, v{V_PV}")
            P(f"v_cmp_gt_u32 vcc, {j+1}, v{V_M}")
            P(f"s_cbranch_vccz L_ok{j}")
            P.slow(True)
            P(f"buffer_load_dword v{V_PV}, v{V_VF}, s[{S_FL}:{S_FL+3}], 0 offen sc0 sc1")
            P("s_waitcnt vmcnt(0)")
            P(f"s_sub_u32 s3, s3, 1\ns_cmp_gt_i32 s3, 0\ns_cbranch_scc1 L_chk{j}")
            P.slow(False)
            P(f"L_ok{j}:")
            if j == lasts[0]:
                P(f"v_cmp_lt_u32 vcc, 15, v{V_PV}")
                P(f"v_mbcnt_lo_u32_b32 v{V_M+1}, -1, 0\nv_mbcnt_hi_u32_b32 v{V_M+1}, -1, v{V_M+1}\nv_lshrrev_b32 v{V_M+1}, 4, v{V_M+1}")
                P(f"v_lshrrev_b32 v{V_M+1}, v{V_M+1}, vcc_lo")
                for i in range(4):
                    P(f"v_bfe_u32 v{V_AK+i}, v{V_M+1}, {4*i}, 1")
                    P(f"v_lshl_add_u32 v{V_AK+i}, v{V_AK+i}, 13, v{V_VR}")
            if j == 6: stamp()
        elif k == 'L':
            i = op[2]; n = 4*j + i
            if i == 0: P(f"s_lshl_b32 s{S_T+1}, s{ROT+j}, {PSH}")
            else: P(f"s_add_u32 s{S_T+1}, s{S_T+1}, {4*WGS}")
            P(f"buffer_load_dwordx4 a[{4*n}:{4*n+3}], v{V_AK+i}, s[{S_RD}:{S_RD+3}], s{S_T+1} offen{fl(cfg.ld_flag)}")
            vm.append(op)
    nb = 0
    for it in items:
        if it['reads']: it['buf'] = V_A + 4*(nb % 8); nb += 1
    rd_items = [i for i, it in enumerate(items) if it['reads']]
    issue_at = {}
    for k, j_ in enumerate(rd_items):
        if k >= cfg.pd:
            i_ = max(rd_items[k - cfg.pd], j_ - cfg.pd - 1)
            assert i_ not in issue_at
            issue_at[i_] = j_
    areg = {'K': V_AK, 'T': V_AT, 'X': V_AX, 'U': V_AK}
    regbase = {}
    def lds_off(kind, idx, sb, rel):
        r = areg[kind] + idx
        off = sb + rel - regbase.get(r, 0)
        if off < 0 or off > 65535:
            nbse = (sb // 65536) * 65536
            P(f"v_add_u32 v{r}, {(nbse - regbase.get(r, 0)) & 0xffffffff}, v{r}")
            regbase[r] = nbse; off = sb + rel - nbse
            late[0] += 1
        return r, off
    late = [0]
    baseA = []
    def issue_reads(i):
        it = items[i]
        sb = slot_of[it['stage']] * 16384
        for k, (kind, idx, rel) in enumerate(it['reads']):
            r, off = lds_off(kind, idx, sb, rel)
            ab = it['buf']
            if kind == 'K' and cfg.k128: P(f"ds_read_b128 v[{ab}:{ab+3}], v{r} offset:{off}")
            else: P(f"{'ds_read_b64' if kind == 'K' else 'ds_read_b64_tr_b16'} v[{ab+2*k}:{ab+2*k+1}], v{r} offset:{off}")
            lds.append(i)
    def early_rebase(i):
        o = []
        for (kind, idx) in sorted({(k_, x_) for k_, x_, _ in items[i]['reads']}):
            r = areg[kind] + idx
            nxt = next((j for j in rd_items if j > i and any(k_ == kind and x_ == idx for k_, x_, _ in items[j]['reads'])), None)
            if nxt is None or items[nxt]['stage'] not in slot_of or nxt - i > 40: continue
            sb = slot_of[items[nxt]['stage']] * 16384
            if not (0 <= sb - regbase.get(r, 0) <= 65536 - 16384):
                nbse = (sb // 65536) * 65536
                o.append(f"v_add_u32 v{r}, {(nbse - regbase.get(r, 0)) & 0xffffffff}, v{r}")
                regbase[r] = nbse
        return o
    published = [-1]
    poolslot = [None]; poolback = [None]
    lead = [None]
    pend = []
    xq = []
    def publish(e, i):
        nonlocal pend
        for x in pend: emit_dma(x)
        if events[e]:
            idx = max(k for k, tg in enumerate(vm) if tg in events[e])
            for s in events[e]: assert vm.count(s) == 4, (e, s)
            if events[e][0] in wpos:
                n_ = len(lds) - 1 - wpos[events[e][0]]
                if wpos[events[e][0]] > ldone[0]: P(f"s_waitcnt lgkmcnt({min(15, n_)})")
            else: P(f"s_waitcnt vmcnt({min(63, len(vm)-1-idx)})")
            waited[0] = max(waited[0], idx)
            if idx >= zero_mark and lead[0] is None: lead[0] = (qend + 16*7 + 4) if cfg.lflag else i + 3
        elif e == 47:
            assert ldone[0] == len(lds) - 1
        P("s_barrier")
        if cfg.stamps and e in cfg.stamp_events: stamp()
        published[0] = e
        if e >= 2:
            for s in events[e-2]:
                if not (s[0] == 'wo' and s[1] < 4) and not (cfg.xfree and s[0] == 'x'): free.append(slot_of[s])
            if e >= 35 and (e - 35) % 4 == 0 and (e - 35)//4 < 4: free.append(slot_of[('wo', (e - 35)//4)])
        if cfg.xfree and e >= 1 and events[e-1] and events[e-1][0][0] == 'x': free.append(slot_of[events[e-1][0]])
        if e == poolback[0]: free.append(poolslot[0])
        pend = next_stages(e, cfg.maxn if e < 47 else 10)
        if events[e] and events[e][0][0] == 'x':
            j = events[e][0][1]
            for s2 in range(2):
                for u in range(2): xq.append((j, s2, u))
    def xread():
        j, s2, u = xq.pop(0)
        r, off = lds_off('X', s2, slot_of[('x', j)]*16384, 2048*u)
        b = V_QA + 16*(j % 2) + 8*s2 + 4*u
        P(f"ds_read_b128 v[{b}:{b+3}], v{r} offset:{off}")
        lds.append(16*(2*j + s2))
        if u == 1 and ('x', j+1) in slot_of:
            sb = slot_of[('x', j+1)]*16384
            if not (0 <= sb - regbase.get(r, 0) <= 65536 - 16384):
                nbse = (sb // 65536) * 65536
                d = (nbse - regbase.get(r, 0)) & 0xffffffff
                regbase[r] = nbse
                return [f"v_add_u32 v{r}, {d}, v{r}"]
        return []
    def wait_for(i):
        assert not any(16*(2*j + s2) <= i for j, s2, u in xq)
        last = max(k for k, tg in enumerate(lds) if tg <= i)
        ldone[0] = max(ldone[0], last)
        P(f"s_waitcnt lgkmcnt({min(15, len(lds)-1-last)})")
    for k_, w_ in enumerate(cfg.qwarm):
        if w_ < 0: P(f'QW{k_}:')
    publish(0, -1)
    while xq:
        for x in xread(): P(x)
    for k in range(cfg.pd): issue_reads(rd_items[k])
    wait_for(0)
    pub_at = {}
    for i in range(N):
        t_ = issue_at.get(i)
        if t_ is not None and items[t_]['ev'] not in pub_at: pub_at[items[t_]['ev']] = i - 1
    pub_at[46] = pvend - 7; pub_at[47] = outbase + 2
    pub_item = {v: k for k, v in pub_at.items() if k > 0}
    since = 99
    over = 0
    for i, it in enumerate(items):
        if cfg.anchor is not None:
            if i == pvbase[cfg.anchor]: P('ANCHOR:')
            for w_ in cfg.warm:
                if i == pvbase[w_] + 8: P(f'WARM{w_}:')
        if i == send:
            for q_ in range(4):
                P(f"v_mov_b32 v{V_AK+q_}, v{V_AT+q_}"); regbase[V_AK+q_] = regbase.get(V_AT+q_, 0)
        for x in it['pre']: P(x)
        A = it['A'] or f"v[{it['buf']}:{it['buf']+3}]"
        def mf(u): P(f"v_mfma_f32_16x16x32_bf16 {it['D'][u]}, {A}, {it['B'][u]}, {'0' if it['first'] else it['D'][u]}")
        mf(0); P.ins[-1].m0 = True
        if i + 1 < N and (items[i+1]['reads'] or max(k for k, tg in enumerate(lds) if tg <= i + 1) > ldone[0]): wait_for(i + 1)
        must = []
        if i in issue_at:
            issue_reads(issue_at[i])
            must = early_rebase(issue_at[i])
        if True:
            for _ in range(2 - (len(items[issue_at[i]]['reads']) if i in issue_at else 0)):
                if fifo and fifo[0][0] <= i and cost(fifo[0][2]) == 1: P(fifo.pop(0)[2])
        mf(1); P.ins[-1].m1 = True
        if cfg.extra and i < cfg.extra_end and i % 16 in (1, 5, 11, 14)[:cfg.extra]:
            for u in range(2): P(f"v_mfma_f32_16x16x32_bf16 a[{4+4*u}:{7+4*u}], {A}, {it['B'][u]}, 0")
        if cfg.sextra and qend <= i < qend + 16*15 and (i % 16) * cfg.sextra // 16 != ((i % 16) + 1) * cfg.sextra // 16:
            P(f"v_mfma_f32_16x16x32_bf16 a[240:243], {A}, {it['B'][0]}, 0")
            P(f"ds_read_b64 v[128:129], v{V_AK} offset:0\nds_read_b64 v[130:131], v{V_AK+1} offset:2048"); lds.extend([10**6, 10**6])
            P(f"v_mfma_f32_16x16x32_bf16 a[244:247], {A}, {it['B'][1]}, 0")
        room = cfg.pvroom if pvend - 17 <= i < pvend else 2
        for x in it.get('race', []): P(x)
        for (fi, hf) in it.get('pr', []):
            r, off = lds_off('U', fi % 4, slot_of[('wo', fi//16)]*16384, ((fi % 16)//4)*4096 + 2048*hf)
            P(f"ds_read_b64_tr_b16 a[{4*fi+2*hf}:{4*fi+2*hf+1}], v{r} offset:{off}")
            lds.append(min(user[fi], outbase + 1))
        shadow = True
        since += 1
        for k_, w_ in enumerate(cfg.qwarm):
            if w_ == i: P(f'QW{k_}:')
        if i in pub_item:
            publish(pub_item[i], i); shadow = False; room -= 1
            if xq: must += xread(); room -= 1
        elif i == lead[0]:
            P(f"s_cmp_lg_u32 s{S_LEAD}, 0\ns_cbranch_scc1 L_nl")
            P.slow(True)
            P(f"s_add_u32 s7, s{RB+2}, 1\nv_mov_b32 v249, s7\ns_mov_b64 exec, 1" if cfg.lflag else "v_mov_b32 v249, 1\ns_mov_b64 exec, 1")
            P(f"buffer_store_dword v249, v248, s[{S_DB}:{S_DB+3}], 0 offen sc0 sc1")
            P("s_mov_b64 exec, -1")
            P.slow(False)
            P("L_nl:")
            shadow = False; room -= 1
        else:
            nxtpub = min([x for x in pub_item if x > i], default=N)
            nd = sum(1 for x in pend if x[0] == 'D')
            urgent = len(pend) >= nxtpub - i
            if xq:
                if pend and pend[0][0] == 'S': emit_dma(pend.pop(0))
                must += xread(); room -= 1; shadow = False
            elif pend and pend[0][0] in 'SV':
                emit_dma(pend.pop(0)); shadow = False
                if (urgent or qend - 40 <= i < outbase) and pend[0][0] == 'S': emit_dma(pend.pop(0)); room -= 1
                if urgent and len(pend) >= nxtpub - i: emit_dma(pend.pop(0)); room -= 2; since = 0
            elif pend and not it['ops'] and not it['mem'] and (urgent or (not must and since >= min((cfg.dma_gap if i < qend - 40 else cfg.out_gap if i >= outbase else cfg.kv_gap), max(1, (nxtpub - i) // len(pend))))):
                emit_dma(pend.pop(0)); room -= 2; since = 0; shadow = False
        if it.get('ldsw'):
            poolslot[0] = free.pop()
            P(f"s_lshl_b32 s7, s{S_W}, 2\ns_add_u32 s7, s7, {poolslot[0]*16384}\nv_mov_b32 v250, s7\nv_mov_b32 v251, s{RB+3}")
            P("ds_write_b32 v250, v251"); lds.append(i + 8)
        if it.get('ldsr'):
            P(f"v_mov_b32 v250, {poolslot[0]*16384}")
            P("ds_read_b128 v[252:255], v250"); lds.append(it['ldsr'])
            poolback[0] = published[0] + 3
        for x in it['mem']:
            tag = ('m', 0)
            if isinstance(x, tuple): x, tag = x
            P(x); room -= 1
            if x.startswith(('buffer', 'global')): vm.append(tag)
        for op in it['ops']: emit_op(op); shadow = False
        for x in must: P(x); room -= 1; shadow = False
        while fifo and fifo[0][0] <= i:
            c = cost(fifo[0][2])
            c = (0 if shadow else 1) if c == 'S' else c
            need = any(f[1] <= i for f in fifo[:80])
            if not need:
                accu = 0
                for f in fifo[:120]:
                    if f[0] > i + 4 or f[0] == f[1]: break
                    cc = cost(f[2]); accu += 1 if cc == 'S' else cc
                    if accu > sum(2 if t_ in issue_at else cfg.freecap for t_ in range(i + 1, f[1] + 1)): need = True; break
            if c <= room or need:
                P(fifo.pop(0)[2]); room -= c; shadow = False
            else: break
        if room < 0 and (i < qend or i >= outbase): over += -room
    assert not fifo and not pend
    stamp()
    A1 = 0
    DS = [8*j + 8 for j in range(7)]
    def selector():
        P("v_mbcnt_lo_u32_b32 v64, -1, 0\nv_mbcnt_hi_u32_b32 v64, -1, v64")
        P("v_and_b32 v65, 1, v64\nv_lshlrev_b32 v65, 4, v65\nv_mov_b32 v66, 0x3f80\nv_lshlrev_b32 v66, v65, v66\nv_bfe_u32 v65, v64, 1, 3")
        for k in range(4):
            P(f"v_cmp_eq_u32 vcc, {k}, v65")
            P(f"v_cndmask_b32 v{A1+k}, 0, v66, vcc")
    for op in tail:
        emit_op(op)
        if op == ('X', 6, 3): selector()
    def finp(j):
        P(f"v_cvt_pk_bf16_f32 v{DS[j]}, v{DS[j]}, v{DS[j]+1}")
        P(f"v_cvt_pk_bf16_f32 v{DS[j]+1}, v{DS[j]+2}, v{DS[j]+3}")
        P("s_mov_b32 exec_hi, 0")
        P(f"buffer_store_dwordx2 v[{DS[j]}:{DS[j]+1}], v{V_VO}, s[{S_OUT}:{S_OUT+3}], s{ROT+j} offen{fl(cfg.out_flag)}")
        vm.append(('O', j))
        P("s_mov_b32 exec_hi, -1")
    for j in range(7):
        d = R('v', DS[j], 4)
        for i in range(4):
            n = 4*j + i
            vwait(('L', j, i))
            P(f"v_mfma_f32_16x16x32_bf16 {d}, v[{A1}:{A1+3}], a[{4*n}:{4*n+3}], {'0' if i == 0 else d}")
        if j >= 1: finp(j - 1)
    finp(6)
    if cfg.stamps:
        P("s_waitcnt vmcnt(0)")
        stamp()
        P("s_waitcnt lgkmcnt(0)")
        P(f"s_add_u32 s{S_T}, s90, 0x7000000\ns_addc_u32 s{S_T+1}, s91, 0\ns_mov_b32 s{S_T+2}, 0x100000\ns_mov_b32 s{S_T+3}, 0x20000")
        P(f"s_lshl_b32 s5, s2, 10\ns_lshl_b32 s6, s{S_W}, 8\ns_add_u32 s5, s5, s6")
        P("v_mov_b32 v1, s5")
        for k in range(nst[0]):
            P(f"v_mov_b32 v2, s{S_ST+2*k}\nv_mov_b32 v3, s{S_ST+2*k+1}")
            P(f"buffer_store_dwordx2 v[2:3], v1, s[{S_T}:{S_T+3}], 0 offen offset:{8*k}")
            P("s_nop 2")
        P(f"v_mov_b32 v2, s{RB+3}\nv_mov_b32 v3, 0\nbuffer_store_dwordx2 v[2:3], v1, s[{S_T}:{S_T+3}], 0 offen offset:248")
        P("s_waitcnt vmcnt(0)")
    P("L_end:")
    P("s_endpgm")
    for _ in range(cfg.pad): P("s_nop 0")
    P.info = dict(late=late[0], over=over)
    return P, nst[0]

def gen(cfg):
    main, nst = gen_main(cfg)
    if cfg.align:
        import align
        main.info['align'] = align.align_items(main, lambda t: f'.amdgcn_target "amdgcn-amd-amdhsa--gfx950"\n.text\n.set CODE_END_OFF, L_end - {KNAME}\n' + t, cfg.align)
    if cfg.qwarm:
        import align
        main.info['qhooks'] = align.page_hooks(main, lambda t: f'.amdgcn_target "amdgcn-amd-amdhsa--gfx950"\n.text\n.set CODE_END_OFF, L_end - {KNAME}\n' + t, 1, KNAME + ":", "QW", "Q", cfg.koff, False)
    if cfg.anchor is not None:
        import align
        main.info['hooks'] = align.page_hooks(main, lambda t: f'.amdgcn_target "amdgcn-amd-amdhsa--gfx950"\n.text\n.set CODE_END_OFF, L_end - {KNAME}\n' + t, cfg.hooklines)
    s = HEADER
    s += f"; @launch grid=(256,1,1) block=(256,1,1) lds={cfg.nslots*16384}\n"
    s += '.amdgcn_target "amdgcn-amd-amdhsa--gfx950"\n.text\n'
    s += f".set CODE_END_OFF, L_end - {KNAME}\n"
    s += f".globl {KNAME}\n.p2align 12\n.p2align 8\n.type {KNAME},@function\n" + main.text()
    s += kd(KNAME, 512, 102, 256)
    Ls = s.split('\n')
    lastk = max(i for i, l in enumerate(Ls) if 's[8:11]' in l and 'buffer_load' in l)
    assert lastk < min(i for i, l in enumerate(Ls) if 'v_mul_lo_u32 v200' in l), "K voffsets overwritten too early"
    lastq = max(i for i, l in enumerate(Ls) if ' lds' in l and ('s[16:19]' in l or 's[24:27]' in l))
    assert lastq < min(i for i, l in enumerate(Ls) if 'v_lshlrev_b32' in l and ' v192, 4' in l)
    return s, (main.nops, main.info)

if __name__ == "__main__":
    s, nops = gen(Cfg())
    open('g11.s', 'w').write(s)
    print("nops/info", nops, "lines", s.count('\n'))
```

```python
import sys, struct
sys.path.insert(0, 'gen')
from asmdsl import Prog, R
from gen1 import KNAME, HEADER, f32hex, kd

class Cfg:
    nslots = 10
    pd = 6
    kv_flag = "nt"
    w_flag = ""
    wo_flag = ""
    x_flag = ""
    st_flag = "sc0 sc1"
    ld_flag = "sc0 sc1"
    out_flag = ""
    stamps = False
    stamp_op = "s_memrealtime"
    stamp_events = ()
    code_pf2 = None
    no_dma = False
    dma_gap = 3
    kv_gap = 2
    ahead = 2
    ahead0 = 3
    ramp_ev = 14
    q_ahead = 3
    wo_ahead = 99
    wo_free = 46
    npro = 5
    pro_split = 2
    spin_max = 200000
    st_start = 40
    st_gap = 6
    t_flag = 40
    groups = (4, 3)
    keeps = (6,)
    early_a = None
    t_pa = 209
    ones = True
    lastsplit = True
    maxn = 3
    fullp = False
    brace = 0
    lflag = True
    vreq = {}
    tlb = None
    pstamp = False
    qwarm = ()
    koff = 768
    anchor = 12
    warm = (12, 13, 14)
    hooklines = 1
    align = 0
    k128 = False
    prenorm = True
    kmerge = 1
    freecap = 3
    q_sched = ()
    xfree = False
    pf3 = (240, 440, 590, 690)
    pad = 0
    pf0 = 16
    pf_off = 3072
    out_gap = 1
    wo_req = (27, 31, 35, 39, 43, 43, 44, 44, 44, 45, 45, 46, 47, 47)
    w64 = True
    instream = None
    swin = True
    kst = {4: 58, 9: 86, 14: 138}
    kst_gap = 2
    wopf = (18, 20, 22, 24, 26, 28, 30)
    sextra = 0
    extra = 0
    extra_end = 176
    kreq = ()
    cw = 2
    pvroom = 3
    boost = ()
    pool = True
    wo_early = ()
    probe_at = 20
    race_beg = 4
    races = (86, 118)
    race_len = 22
    dump_score = False
    force = None
    iod = None
    rot = 3
    def __init__(self, **kw):
        for k, v in kw.items(): setattr(self, k, v)

PART = 114688
FLAG_OFF = 0x2000000
S_K, S_V, S_WQ, S_WO, S_X, S_WS = 8, 12, 16, 20, 24, 28
S_P, S_B, S_H, S_W = 32, 33, 34, 35
S_LW4K, S_LEAD, S_OFF, S_C = 36, 37, 38, 39
S_T = 40
S_FL = 44
S_ST = 48
S_DB = 76
S_ROT = 64
S_RD = S_X
S_OUT = S_WQ
V_X = 0
V_QA = 128
V_A = 160
V_OWQ, V_OX, V_OK, V_OV, V_OWO, V_AK, V_AT = 192, 196, 200, 204, 208, 212, 216
V_M, V_MC = 220, 222
V_T2 = 224
V_AX, V_G4, V_LANE = 240, 242, 243
V_SO, V_FO, V_RDY, V_VF = 192, 193, 194, 195
V_L = 196
V_VR, V_VO, V_PV, V_FV = 200, 201, 202, 203
V_KW = 222
V_ONE, V_SUM = 244, 248

def cost(x):
    op = x.split()[0]
    if op.startswith('s_'): return 'S'
    if op in ('v_exp_f32', 'v_rcp_f32'): return 2
    return 1

def gen_main(cfg):
    P = Prog()
    ROT = 80 if cfg.stamps else S_ROT
    LOC = True
    RB = 72 if not cfg.stamps else 72
    RA = [(56+2*k, 57+2*k) for k in range(4)] if not cfg.stamps else [(87, 88), (89, 101), (0, 1), (98, 99)]
    WGS = 262144 if LOC else PART
    PSH = 8 if LOC else 5
    FOFF = 0x6000000 if LOC else FLAG_OFF
    nst = [0]
    def stamp():
        if cfg.stamps:
            P(f"{cfg.stamp_op} s[{S_ST+2*nst[0]}:{S_ST+2*nst[0]+1}]")
            nst[0] += 1
    def fl(f): return (" " + f) if f else ""
    def srd(b, lo, off, size):
        return [f"s_add_u32 s{b}, s{lo}, {off}\ns_addc_u32 s{b+1}, s{lo+1}, 0", f"s_mov_b32 s{b+2}, {size}", f"s_mov_b32 s{b+3}, 0x20000"]
    P(f"{KNAME}:")
    stamp()
    P("s_cmp_ge_u32 s2, 256")
    P("s_cbranch_scc1 L_end")
    P("s_and_b32 s3, s2, 7")
    P(f"s_lshr_b32 s{S_P}, s3, 2")
    P(f"s_mul_i32 s5, s{S_P}, 40")
    P("s_add_u32 s6, s0, s5")
    P("s_addc_u32 s7, s1, 0")
    P("s_load_dwordx4 s[80:83], s[6:7], 0")
    P("s_load_dwordx4 s[84:87], s[6:7], 16")
    P("s_load_dwordx2 s[88:89], s[6:7], 32")
    P("s_load_dwordx2 s[90:91], s[0:1], 96")
    P("s_load_dwordx4 s[96:99], s[0:1], 80")
    P("s_lshr_b32 s4, s2, 3")
    P("s_and_b32 s5, s4, 3")
    P("s_and_b32 s6, s3, 3")
    P("s_lshl_b32 s6, s6, 2")
    P(f"s_add_u32 s{S_H}, s5, s6")
    P(f"s_lshr_b32 s{S_B}, s4, 2")
    vm = []
    P("s_getpc_b64 s[92:93]")
    P("s_and_b32 s92, s92, 0xffffff00")
    if cfg.pf0 == 'full':
        P("s_lshl_b32 s7, s5, 14")
        P("v_lshlrev_b32 v250, 6, v0")
        P("v_add_u32 v250, s7, v250")
        P("v_min_u32 v250, CODE_END_OFF - 64, v250")
        P("global_load_dword v251, v250, s[92:93]")
    else:
        P(f"s_and_b32 s7, s4, {cfg.pf0 - 1}\ns_lshl_b32 s7, s7, 12")
        P("v_lshrrev_b32 v250, 6, v0\nv_lshlrev_b32 v250, 10, v250\nv_and_b32 v251, 15, v0\nv_lshl_add_u32 v250, v251, 6, v250")
        P("v_add_u32 v250, s7, v250")
        P("v_min_u32 v250, CODE_END_OFF - 64, v250")
        P("s_mov_b64 exec, 0xffff\nglobal_load_dword v251, v250, s[92:93]\ns_mov_b64 exec, -1")
    vm.append(('pf', 0))
    RR, PC, SWP, W_, T0, T1, T2, SWK, T3 = range(V_T2, V_T2+9)
    L = V_LANE
    P(f"v_lshrrev_b32 v{W_}, 6, v0")
    P(f"v_and_b32 v{L}, 63, v0")
    P(f"v_readfirstlane_b32 s{S_W}, v{W_}")
    P(f"v_lshrrev_b32 v{RR}, 3, v{L}")
    P(f"v_and_b32 v{PC}, 7, v{L}")
    P(f"v_lshrrev_b32 v{T1}, 1, v{RR}")
    P(f"v_xor_b32 v{SWK}, v{PC}, v{T1}")
    P(f"v_lshlrev_b32 v{SWK}, 4, v{SWK}")
    P(f"s_lshl_b32 s{S_LW4K}, s{S_W}, 12")
    P(f"v_lshl_add_u32 v{T0}, v{W_}, 5, v{RR}")
    P(f"v_mul_u32_u24 v{T0}, 896, v{T0}")
    P(f"v_add_u32 v{T1}, v{T0}, v{SWK}")
    P(f"v_xor_b32 v{T2}, 64, v{T1}")
    for i in range(4): P(f"v_add_u32 v{V_OX+i}, {i*8*896 - 1024*i}, v{T1 if i % 2 == 0 else T2}")
    P(f"v_and_b32 v{T1}, 2, v{RR}")
    P(f"v_xor_b32 v{T1}, v{PC}, v{T1}")
    P(f"v_lshlrev_b32 v{T1}, 4, v{T1}")
    P(f"v_lshl_add_u32 v{T1}, v{W_}, 7, v{T1}")
    P(f"v_lshl_add_u32 v{T1}, v{RR}, 13, v{T1}")
    P(f"v_xor_b32 v{T2}, 64, v{T1}")
    for i in range(4): P(f"v_add_u32 v{V_OWQ+i}, {i*8*8192 - 1024*i}, v{T1 if i % 2 == 0 else T2}")
    P(f"s_mul_i32 s5, s{S_B}, 114688")
    P(f"s_lshl_b32 s6, s{S_H}, 9")
    P(f"s_mov_b32 s{S_X+2}, 114688\ns_mov_b32 s{S_X+3}, 0x20000")
    P(f"s_sub_u32 s{S_WQ+2}, 3670016, s6\ns_mov_b32 s{S_WQ+3}, 0x20000")
    if cfg.rot == 2: P(f"s_xor_b32 s7, s{S_H}, s{S_B}\ns_and_b32 s7, s7, 1\ns_lshl_b32 s7, s7, 2")
    if cfg.rot == 4: P(f"s_add_u32 s7, s{S_H}, s{S_B}\ns_and_b32 s7, s7, 3\ns_lshl_b32 s7, s7, 1")
    if cfg.rot == 3: P(f"s_add_u32 s7, s{S_H}, s{S_B}\ns_and_b32 s7, s7, 3\ns_lshl_b32 s7, s7, 2\ns_lshr_b32 s7, 0x5025, s7\ns_and_b32 s7, s7, 7")
    if cfg.rot == 7: P(f"s_and_b32 s7, s{S_H}, 3\ns_lshl_b32 s7, s7, 1\ns_add_u32 s7, s7, s{S_B}\ns_sub_u32 s94, s7, 7\ns_min_u32 s7, s7, s94")
    if cfg.rot == 23: P(f"s_xor_b32 s7, s{S_H}, s{S_B}\ns_and_b32 s7, s7, 1\ns_mul_i32 s7, s7, 3")
    if cfg.rot: P("s_lshl_b32 s94, s7, 7\ns_lshl_b32 s95, s7, 19")
    if cfg.probe_at < 0:
        P(f"v_and_b32 v246, 1, v{L}\nv_lshrrev_b32 v247, 1, v{L}")
        P(f"v_and_b32 v244, 1, v247\nv_lshlrev_b32 v244, 12, v244\nv_lshl_add_u32 v244, v247, 7, v244\nv_lshl_add_u32 v244, v246, 13, v244")
        P(f"v_lshl_add_u32 v244, v{W_}, 10, v244\nv_add_u32 v244, 0x38000, v244\nv_add_u32 v246, 1, v246")
        P(f"s_lshl_b32 s7, s{S_P}, 3\ns_add_u32 s7, s7, s{S_B}\ns_lshl_b32 s7, s7, 4\ns_add_u32 s7, s7, s{S_H}\ns_lshl_b32 s7, s7, 18")
        P(f"s_mov_b32 s{S_WS+2}, {WGS}\ns_mov_b32 s{S_WS+3}, 0x20000")
    if cfg.pstamp: stamp()
    P("s_waitcnt lgkmcnt(0)")
    if cfg.pstamp: stamp()
    P(f"s_add_u32 s{S_X}, s80, s5\ns_addc_u32 s{S_X+1}, s81, 0")
    P(f"s_add_u32 s{S_WQ}, s86, s6\ns_addc_u32 s{S_WQ+1}, s87, 0")

    ST = {}
    for j in range(7): ST[('x', j)] = (S_X, V_OX, 128*j, cfg.x_flag)
    for s in range(14): ST[('wq', s)] = (S_WQ, V_OWQ, 32*s*8192, cfg.w_flag)
    for s in range(16): ST[('k', s)] = (S_K, V_OK, 32*s*512, cfg.kv_flag)
    for s in range(16): ST[('v', s)] = (S_V, V_OV, 32*s*512, cfg.kv_flag)
    for s in range(14): ST[('wo', s)] = (S_WO, V_OWO, None, cfg.wo_flag)
    events = []
    for s in range(14): events.append(([('x', s//2)] if s % 2 == 0 else []) + [('wq', s)])
    for s in range(16): events.append([('k', s)])
    for s in range(16): events.append(([('wo', s//4)] if s % 4 == 0 else []) + [('v', s)])
    events += [[], []]
    for j in range(2, 7): events.append([('wo', 2*j), ('wo', 2*j+1)])
    order = [s for e in events for s in e]
    for k, e_ in enumerate(cfg.kreq):
        tgt = next((s_ for s_ in order if s_[0] in ('x', 'wq') and [i_ for i_, l_ in enumerate(events) if s_ in l_][0] - cfg.q_ahead > e_), None)
        if tgt is not None:
            order.remove(('k', k)); order.insert(order.index(tgt), ('k', k))
    order = [s_ for s_ in order if s_[0] != 'wo' and not (s_[0] == 'v' and s_[1] in cfg.vreq)]
    vq = sorted(cfg.vreq, key=lambda k_: cfg.vreq[k_])
    woq = sorted(range(14), key=lambda k_: cfg.wo_req[k_] if k_ < len(cfg.wo_req) else 100 + k_)
    slot_of = {}
    free = list(range(cfg.nslots))
    nload = [0]
    ev_of = {s: e for e, l in enumerate(events) for s in l}
    def next_stages(e, maxn):
        g = []; n = 0
        while free and n < maxn:
            s = order[nload[0]] if nload[0] < len(order) else None
            if s is not None:
                if s[0] == 'k' and s[1] < len(cfg.kreq):
                    if e < cfg.kreq[s[1]]: s = None
                elif s[0] in 'kv':
                    dist = sum(1 for e_ in range(e + 1, ev_of[s] + 1) if not (events[e_][-1][0] == 'k' and events[e_][-1][1] in cfg.kst) and not (events[e_][-1][0] == 'v' and events[e_][-1][1] in cfg.vreq))
                    if dist > (cfg.ahead0 if e < cfg.ramp_ev else cfg.ahead + (1 if e in cfg.boost else 0)): s = None
                elif e >= 0 and ev_of[s] - e > (cfg.q_sched[e] if e < len(cfg.q_sched) else cfg.q_ahead): s = None
            if s is not None: nload[0] += 1
            elif vq and e >= cfg.vreq[vq[0]]: s = ('v', vq.pop(0))
            elif woq and e >= (cfg.wo_req[woq[0]] if woq[0] < len(cfg.wo_req) else 44) and (len(free) > 1 or nload[0] >= len(order)): s = ('wo', woq.pop(0))
            else: break
            n += 1
            slot_of[s] = free.pop(0)
            sr, vo, so, f = ST[s]
            if s[0] == 'k' and s[1] in cfg.kst:
                g.append(('V', f"v_add_u32 v{V_KW+1}, {slot_of[s]*16384}, v{V_KW}", s))
                if cfg.w64:
                    for i in range(8): g.append(('W', f"ds_write_b64 v{V_KW+1}, a[{16*s[1]+2*i}:{16*s[1]+2*i+1}] offset:{1024*(i//2) + 8*(i % 2)}", s))
                else:
                    for i in range(4): g.append(('W', f"ds_write_b128 v{V_KW+1}, a[{16*s[1]+4*i}:{16*s[1]+4*i+3}] offset:{1024*i}", s))
                continue
            g.append(('S', f"s_add_u32 m0, s{S_LW4K}, {slot_of[s]*16384}"))
            soff = f"s{S_OFF}"
            if s[0] == 'wo':
                if s[1] % 2 == 0: soff = f"s{ROT + s[1]//2}"
                else: g.append(('S', f"s_add_u32 s{S_OFF}, s{ROT + s[1]//2}, {128*896}"))
            elif cfg.rot and s[0] in ('x', 'wq'):
                rr, tot = (94, 7*128) if s[0] == 'x' else (95, 14*32*8192)
                if so == 0: soff = f"s{rr}"
                else:
                    g.append(('S', f"s_add_u32 s{S_OFF}, s{rr}, {so}"))
                    g.append(('S', f"s_sub_u32 s100, s{S_OFF}, {tot}"))
                    g.append(('S', f"s_min_u32 s{S_OFF}, s{S_OFF}, s100"))
            elif so == 0: soff = "0"
            else: g.append(('S', f"s_mov_b32 s{S_OFF}, {so}"))
            for i in range(4):
                g.append(('D', f"buffer_load_dwordx4 v{vo+i}, s[{sr}:{sr+3}], {soff} offen offset:{1024*i}{fl(f)} lds", s))
        return g
    def emit_dma(x):
        if x[0] == 'S': P(x[1])
        elif x[0] == 'V':
            idx = max(k for k, tg in enumerate(vm) if tg == x[2])
            if idx > waited[0]: P(f"s_waitcnt vmcnt({min(63, len(vm)-1-idx)})")
            P(x[1])
        elif x[0] == 'W':
            P(x[1]); lds.append(10**6); wpos[x[2]] = len(lds) - 1
        else:
            if not cfg.no_dma: P(x[1])
            vm.append(x[2])
    lds = []; wpos = {}; waited = [-1]; ldone = [-1]
    def early_probe():
        P(f"s_add_u32 s{S_WS}, s90, s7\ns_addc_u32 s{S_WS+1}, s91, 0")
        P(f"s_mov_b64 exec, {(1 << (2*len(cfg.races))) - 1}\nbuffer_store_dword v246, v244, s[{S_WS}:{S_WS+3}], 0 offen sc0 sc1\ns_mov_b64 exec, -1")
        vm.append(('pr', 0))
    if cfg.probe_at == -1: early_probe()
    for x in next_stages(-1, 1): emit_dma(x)
    if cfg.probe_at == -2: early_probe()
    for x in next_stages(-1, cfg.pro_split - 1): emit_dma(x)
    if cfg.pstamp: stamp()
    P(f"v_lshrrev_b32 v{T2}, 4, v{L}")
    P(f"v_and_b32 v{T3}, 15, v{L}")
    P(f"v_lshrrev_b32 v244, 1, v{T3}")
    P(f"v_xor_b32 v{T1}, v244, v{T2}")
    P(f"v_lshlrev_b32 v{T1}, 4, v{T1}")
    P(f"v_lshl_add_u32 v{T1}, v{T3}, 7, v{T1}")
    P(f"v_lshl_add_u32 v{V_AX}, v{W_}, 12, v{T1}")
    P(f"v_xor_b32 v{V_AX+1}, 64, v{V_AX}")
    P(f"v_lshrrev_b32 v{T1}, 1, v{T2}")
    P(f"v_xor_b32 v{T1}, v{T1}, v244")
    P(f"v_lshlrev_b32 v{T1}, 4, v{T1}")
    P(f"v_lshl_add_u32 v{T1}, v{T3}, 7, v{T1}")
    P(f"v_and_b32 v{T3}, 1, v{T2}")
    P(f"v_lshl_add_u32 v{V_AK}, v{T3}, 3, v{T1}")
    for j in range(1, 4): P(f"v_xor_b32 v{V_AK+j}, {32*j}, v{V_AK}")
    if cfg.k128:
        P(f"v_and_b32 v{V_AK}, 0xfff, v{V_AX}\nv_xor_b32 v{V_AK+1}, 64, v{V_AK}")
    P(f"v_bfe_u32 v244, v{L}, 2, 2")
    P(f"v_lshl_add_u32 v{T1}, v{T2}, 3, v244")
    P(f"v_lshlrev_b32 v{T1}, 7, v{T1}")
    P(f"v_lshrrev_b32 v244, 1, v244")
    P(f"v_lshl_add_u32 v244, v{T3}, 1, v244")
    P(f"v_lshl_add_u32 v{T1}, v244, 5, v{T1}")
    P(f"v_and_b32 v244, 3, v{L}")
    P(f"v_lshl_add_u32 v{V_AT}, v244, 3, v{T1}")
    for j in range(1, 4): P(f"v_xor_b32 v{V_AT+j}, {32*j}, v{V_AT}")
    P(f"v_lshlrev_b32 v{V_G4}, 9, v{T2}")
    P(f"v_lshl_add_u32 v{T1}, v{W_}, 7, v{SWK}")
    P(f"v_lshl_add_u32 v{T1}, v{RR}, 9, v{T1}")
    P(f"v_xor_b32 v{T2}, 64, v{T1}")
    for i in range(4): P(f"v_add_u32 v{V_OK+i}, {i*8*512 - 1024*i}, v{T1 if i % 2 == 0 else T2}")
    P(f"v_and_b32 v{T1}, 6, v{RR}")
    P(f"v_xor_b32 v{SWP}, v{PC}, v{T1}")
    P(f"v_lshlrev_b32 v{SWP}, 4, v{SWP}")
    P(f"v_lshl_add_u32 v{T1}, v{W_}, 7, v{SWP}")
    P(f"v_lshl_add_u32 v{T1}, v{RR}, 9, v{T1}")
    for i in range(4): P(f"v_add_u32 v{V_OV+i}, {i*8*512 - 1024*i}, v{T1}")
    P(f"v_add_u32 v{T1}, v{T0}, v{SWP}")
    for i in range(4): P(f"v_add_u32 v{V_OWO+i}, {i*8*896 - 1024*i}, v{T1}")
    P(f"v_mov_b32 v{V_M}, 0xff800000\nv_mov_b32 v{V_M+1}, 0xff800000")
    P(f"v_lshlrev_b32 v{V_KW}, 4, v{L}\nv_add_u32 v{V_KW}, s{S_LW4K}, v{V_KW}")
    P(f"s_mov_b32 s{S_C}, {f32hex(1.4426950408889634/16.0)}")
    P(f"s_or_b32 s{S_LEAD}, s{S_H}, s{S_W}")
    P(f"s_lshl_b32 s5, s{S_B}, 4\ns_add_u32 s5, s5, s{S_H}\ns_lshl_b32 s6, s5, 18")
    for x in srd(S_K, 82, "s6", 262144) + srd(S_V, 84, "s6", 262144): P(x)
    P(f"s_mul_i32 s6, s{S_H}, 229376")
    for x in srd(S_WO, 88, "s6", 229376): P(x)
    P(f"s_lshl_b32 s6, s{S_P}, 7\ns_add_u32 s5, s5, s6\ns_mul_i32 s5, s5, {WGS}")
    for x in srd(S_WS, 90, "s5", WGS): P(x)
    P(f"s_lshl_b32 s4, s{S_P}, 3\ns_add_u32 s4, s4, s{S_B}")
    if cfg.lflag:
        P(f"s_lshl_b32 s5, s4, 22\ns_add_u32 s5, s5, 0x3c000")
        for x in srd(S_FL, 90, "s5", 8192 + 512): P(x)
    else:
        P(f"s_lshl_b32 s5, s4, 9\ns_add_u32 s5, s5, {FOFF}")
        for x in srd(S_FL, 90, "s5", 512): P(x)
    P(f"s_lshl_b32 s5, s4, 2")
    for x in srd(S_DB, 98, "s5", 4): P(x)
    if cfg.tlb == 's':
        for b_, o_ in ((S_K, 0), (S_V, 0), (S_WO, 0), (S_WO, 229312), (S_DB, 0), (96, 0)):
            P(f"s_load_dword s{S_T+3}, s[{b_}:{b_+1}], {o_}")
    if cfg.tlb == 'v':
        P("s_mov_b64 exec, 1\nv_mov_b32 v252, 0")
        for b_ in (S_K, S_V, S_WO):
            P(f"buffer_load_dword v255, v252, s[{b_}:{b_+3}], 0 offen"); vm.append(('tlb', 0))
        P("s_mov_b64 exec, -1")
    P(f"s_cmp_eq_u32 s{S_B}, 7\ns_cselect_b32 s5, 3, s{S_B}\ns_lshl_b32 s{ROT}, s5, 7")
    for j in range(1, 7):
        P(f"s_add_u32 s{ROT+j}, s{ROT+j-1}, 128\ns_cmp_eq_u32 s{ROT+j}, 896\ns_cselect_b32 s{ROT+j}, 0, s{ROT+j}")
    if cfg.fullp:
        P(f"v_bfe_u32 v246, v{L}, 4, 1\nv_lshrrev_b32 v247, 5, v{L}\nv_mul_u32_u24 v244, 4224, v247\nv_lshl_add_u32 v244, v246, 13, v244")
        P(f"v_and_b32 v247, 15, v{L}\nv_lshl_add_u32 v244, v247, 3, v244")
    else:
        P(f"v_and_b32 v246, 1, v{L}\nv_lshrrev_b32 v247, 1, v{L}")
        P(f"v_and_b32 v244, 1, v247\nv_lshlrev_b32 v244, 12, v244\nv_lshl_add_u32 v244, v247, 7, v244\nv_lshl_add_u32 v244, v246, 13, v244")
    P(f"s_lshl_b32 s5, s{S_W}, 10\ns_add_u32 s5, s5, 0x38000")
    P(f"v_add_u32 v246, 1, v246")
    P(f"s_add_u32 s{RB}, s{S_WS}, s5\ns_addc_u32 s{RB+1}, s{S_WS+1}, 0")
    P(f"v_add_u32 v244, s5, v244")
    probe_st = [f"s_mov_b64 exec, {(1 << (2*len(cfg.races))) - 1}", f"buffer_store_dword v246, v244, s[{S_WS}:{S_WS+3}], 0 offen sc0 sc1", "s_mov_b64 exec, -1"]
    if cfg.fullp:
        assert len(cfg.races) == 2
        P("v_mov_b32 v247, v246")
        probe_st = [f"buffer_store_dwordx2 v[246:247], v244, s[{S_WS}:{S_WS+3}], 0 offen sc0 sc1"]
    P(f"s_mov_b32 s{RB+3}, 0")
    if cfg.brace:
        RC = RA[0][0] + (RA[0][0] & 1)
        P(f"s_and_b32 s5, s{S_W}, 1\ns_lshl_b32 s{S_T}, s5, 13\ns_xor_b32 s{S_T+1}, s{S_T}, 0x2000")
        P(f"s_load_dword s7, s[{RB}:{RB+1}], 0x300")
    P(f"v_lshlrev_b32 v{T1}, 3, v{L}")
    P(f"v_mov_b32 v248, 0\nv_mov_b32 v249, 0")
    P(f"s_cmp_lg_u32 s{S_LEAD}, 0\ns_cbranch_scc1 L_nz")
    P.slow(True)
    P(f"buffer_store_dwordx2 v[248:249], v{T1}, s[{S_FL}:{S_FL+3}], 0 offen sc0 sc1")
    if cfg.lflag: P(f"s_movk_i32 s5, 0x2000\nbuffer_store_dwordx2 v[248:249], v{T1}, s[{S_FL}:{S_FL+3}], s5 offen sc0 sc1")
    P.slow(False)
    P("L_nz:")
    zero_mark = len(vm)
    if cfg.pstamp: stamp()
    for x in next_stages(-1, cfg.npro - cfg.pro_split): emit_dma(x)
    stamp()
    for k_ in range(cfg.brace):
        P("s_waitcnt lgkmcnt(0)")
        if k_: P(f"s_add_u32 s{S_T}, s{S_T}, 0x1080\ns_add_u32 s{S_T+1}, s{S_T+1}, 0x1080")
        a_, b_ = f"s_load_dword s7, s[{RB}:{RB+1}], s{S_T}", f"s_load_dwordx2 s[{RC}:{RC+1}], s[{RB}:{RB+1}], s{S_T+1}"
        P(a_ + "\n" + b_ if (k_ % 2 == 0) else b_ + "\n" + a_)
        P("s_waitcnt lgkmcnt(2)")
        P("s_nop 1\ns_getreg_b32 s6, hwreg(HW_REG_IB_STS, 8, 4)")
        if cfg.dump_score: P(f"s_lshl_b32 s{RB+3}, s{RB+3}, 4\ns_or_b32 s{RB+3}, s{RB+3}, s6")
        else: P(f"s_cmp_eq_u32 s6, 2\ns_addc_u32 s{RB+3}, s{RB+3}, 0\ns_cmp_eq_u32 s6, 1\ns_subb_u32 s{RB+3}, s{RB+3}, 0")
    if cfg.brace and not cfg.dump_score:
        P(f"s_sub_u32 s6, 0, s{RB+3}\ns_bitcmp1_b32 s{S_W}, 0\ns_cselect_b32 s{RB+3}, s6, s{RB+3}")

    items = []
    fifo = []
    def item(stage, reads, B, D, first, A=None):
        items.append(dict(stage=stage, ev=ev_of[stage], reads=reads, B=B, D=D, first=first, A=A, pre=[], mem=[], ops=[]))
    def forced(lst, start, n):
        k = len(lst)
        for j in range(n):
            for x in lst[j*k//n:(j+1)*k//n]: fifo.append((start + j, start + j, x))
    def window(lst, rel, dl):
        for x in lst:
            for y in x.split('\n') if not x.startswith('s_add_u32 s') or '\ns_addc' not in x else [x]:
                fifo.append((rel, dl, y))
    def acc(f, base, mt): return [R(f, base + 16*(mt//2) + 8*u + 4*(mt % 2), 4) for u in range(2)]
    def frag(base, a): return [R('v', base + 16*a + 8*u, 4) for u in range(2)]
    for s in range(14):
        xb = V_QA + 16*((s//2) % 2) + 8*(s % 2)
        for mt in range(16):
            rel = (mt//4)*4096
            item(('wq', s), [('T', mt % 4, rel), ('T', mt % 4, rel + 512)], [R('v', xb, 4), R('v', xb+4, 4)], acc('v', V_X, mt), s == 0)
    if cfg.races and cfg.probe_at >= 0: items[cfg.probe_at]['mem'] = probe_st
    for t_, i0_ in cfg.kst.items():
        for i in range(4):
            it_ = i0_ + cfg.kst_gap*i
            while items[it_]['mem'] or it_ % 16 == 9: it_ += 1
            items[it_]['mem'] = [f"s_mov_b32 s{S_T+1}, {32*t_*512}", (f"buffer_load_dwordx4 a[{16*t_+4*i}:{16*t_+4*i+3}], v{V_OK+i}, s[{S_K}:{S_K+3}], s{S_T+1} offen offset:{1024*i}{fl(cfg.kv_flag)}", ('k', t_))]
    for k, t_ in enumerate(cfg.wopf):
        pre_ = [f"s_mul_i32 s{S_T+2}, s{S_B}, 28672", f"s_mul_i32 s{S_T+3}, s{S_W}, 7168", f"s_add_u32 s{S_T+2}, s{S_T+2}, s{S_T+3}", f"v_lshlrev_b32 v253, 4, v{V_LANE}"] if k == 0 else [f"s_add_u32 s{S_T+2}, s{S_T+2}, 1024"]
        while items[t_]['mem'] or t_ % 16 == 9: t_ += 1
        items[t_]['mem'] = pre_ + [f"buffer_load_dwordx4 a[0:3], v253, s[{S_WO}:{S_WO+3}], s{S_T+2} offen"]
    for k, r0 in enumerate(cfg.races):
        a_, b_ = RA[k]
        off = (k & 1)*4096 + k*128
        items[r0]['race'] = [f"s_mov_b32 s{a_}, 0", f"s_mov_b32 s{b_}, 0", f"s_mov_b32 s{RB+2}, 0"]
        first, second = ((a_, off), (b_, off + 8192)) if k % 2 == 0 else ((b_, off + 8192), (a_, off))
        items[r0+1]['race'] = [f"s_load_dword s{first[0]}, s[{RB}:{RB+1}], {first[1]}", f"s_load_dword s{second[0]}, s[{RB}:{RB+1}], {second[1]}"]
        for t_ in range(r0 + cfg.race_beg, r0 + cfg.race_len):
            items[t_]['race'] = [f"s_or_b32 s6, s{a_}, s{b_}", f"s_cmp_eq_u32 s{RB+2}, 0", f"s_cselect_b32 s{RB+2}, s6, s{RB+2}"]
        if cfg.dump_score: items[r0 + cfg.race_len]['race'] = [f"s_lshl_b32 s{RB+3}, s{RB+3}, 4", f"s_or_b32 s{RB+3}, s{RB+3}, s{RB+2}"]
        else: items[r0 + cfg.race_len]['race'] = [f"s_cmp_eq_u32 s{RB+2}, 1", f"s_addc_u32 s{RB+3}, s{RB+3}, 0", f"s_cmp_eq_u32 s{RB+2}, 2", f"s_subb_u32 s{RB+3}, s{RB+3}, 0"]
    def pack(a):
        o = []
        for u in range(2):
            b = V_X + 16*a + 8*u
            o += [f"v_cvt_pk_bf16_f32 v{b+i}, v{b+2*i}, v{b+2*i+1}" for i in range(4)]
        return o
    def maxcode(tl):
        o = []
        tb = V_T2
        for i in range(8):
            o.append(f"v_accvgpr_read_b32 v{tb+2*i}, a{16*tl+2*i}")
            o.append(f"v_accvgpr_read_b32 v{tb+2*i+1}, a{16*tl+2*i+1}")
            if i > 0: o.append(f"v_max3_f32 v{V_M+(i-1)//4}, v{tb+2*i-2}, v{tb+2*i-1}, v{V_M+(i-1)//4}")
        o.append(f"v_max3_f32 v{V_M+1}, v{tb+14}, v{tb+15}, v{V_M+1}")
        return o
    qend = len(items)
    for tl in range(16):
        for a in range(8):
            for T in range(2):
                rel = (a//2)*4096 + T*2048
                item(('k', tl), [('K', a % 2, rel)] if cfg.k128 else [('K', 2*(a % 2), rel), ('K', 2*(a % 2) + 1, rel)], frag(V_X, a), acc('a', 16*tl, T), a == 0)
    def packq(a):
        o = pack(a)
        if cfg.k128:
            for sw in ("v_permlane32_swap_b32", "v_permlane16_swap_b32"):
                for u in range(2):
                    b = V_X + 16*a + 8*u
                    o += [f"{sw} v{b}, v{b+2}", f"{sw} v{b+1}, v{b+3}"]
        return o
    for a in range(8): window(packq(a), qend - 16 + 2*a + 3, qend + 2*a - 1)
    G, Ta, Tb = 245, 246, 247
    misc1 = [f"v_sub_u32 v{V_AT+j}, v{V_AT+j}, v{V_G4}" for j in range(4)] + [
        f"s_lshr_b32 s5, s{S_W}, 1\ns_lshl_b32 s5, s5, 14\ns_and_b32 s6, s{S_W}, 1\ns_lshl_b32 s6, s6, 12\ns_add_u32 s5, s5, s6",
        f"v_lshlrev_b32 v{V_SO}, 4, v{L}", f"v_and_b32 v{V_SO}, 0x70, v{V_SO}",
        f"v_lshrrev_b32 v{G}, 4, v{L}", f"v_lshl_add_u32 v{V_SO}, v{G}, 7, v{V_SO}",
        f"v_bfe_u32 v{Ta}, v{L}, 3, 1", f"v_lshl_add_u32 v{V_SO}, v{Ta}, 10, v{V_SO}", f"v_add_u32 v{V_SO}, s5, v{V_SO}",
        f"s_lshl_b32 s5, s{S_W}, 7", f"s_lshl_b32 s6, s{S_H}, 2", "s_add_u32 s5, s5, s6", f"v_mov_b32 v{V_FO}, s5",
        f"s_lshr_b32 s5, s{S_H}, 2", "s_lshl_b32 s5, s5, 7", f"v_and_b32 v{V_VF}, 15, v{L}", f"v_lshlrev_b32 v{V_VF}, 2, v{V_VF}", f"v_add_u32 v{V_VF}, s5, v{V_VF}",
        f"s_mul_i32 s5, s4, {16*WGS}"] + srd(S_RD, 90, "s5", 16*WGS) + [
        f"s_mov_b32 s{S_OUT}, s96", f"s_mov_b32 s{S_OUT+1}, s97", f"s_mov_b32 s{S_OUT+2}, 1835008", f"s_mov_b32 s{S_OUT+3}, 0x20000",
        f"s_mov_b32 s3, {cfg.spin_max}"] + [f"v_mov_b32 v{V_L+i}, 0" for i in range(4)]
    misc2 = [
        f"s_lshr_b32 s5, s{S_H}, 3\ns_lshl_b32 s5, s5, 14\ns_bfe_u32 s6, s{S_H}, 0x10002\ns_lshl_b32 s6, s6, 12\ns_add_u32 s5, s5, s6", f"s_and_b32 s6, s{S_H}, 3", "s_lshl_b32 s6, s6, 10", "s_add_u32 s5, s5, s6",
        f"s_lshl_b32 s6, s{S_W}, 8", "s_add_u32 s5, s5, s6", f"s_mov_b32 s6, {WGS}",
        f"v_mul_lo_u32 v{V_VR}, v{G}, s6", f"v_lshl_add_u32 v{V_VR}, v{Ta}, 7, v{V_VR}", f"v_and_b32 v{Tb}, 7, v{L}",
        f"v_lshl_add_u32 v{V_VR}, v{Tb}, 4, v{V_VR}", f"v_add_u32 v{V_VR}, s5, v{V_VR}",
        f"s_lshl_b32 s5, s{S_B}, 7", f"s_lshl_b32 s6, s{S_H}, 3", "s_add_u32 s5, s5, s6", "s_mul_i32 s5, s5, 1792",
        f"s_mul_i32 s6, s{S_P}, 896", "s_add_u32 s5, s5, s6", f"s_lshr_b32 s6, s{S_W}, 1", "s_lshl_b32 s6, s6, 6", "s_add_u32 s5, s5, s6",
        f"s_and_b32 s6, s{S_W}, 1", "s_lshl_b32 s6, s6, 4", "s_add_u32 s5, s5, s6",
        f"v_mul_u32_u24 v{V_VO}, 1792, v{Tb}", f"v_lshl_add_u32 v{V_VO}, v{Ta}, 3, v{V_VO}", f"v_and_b32 v{Ta}, 1, v{G}",
        f"v_lshl_add_u32 v{V_VO}, v{Ta}, 5, v{V_VO}", f"v_add_u32 v{V_VO}, s5, v{V_VO}"]
    for tl in range(1, 16):
        base = qend + 16*tl
        if cfg.swin:
            window(maxcode(tl-1), base + 2, base + (17 if tl < 15 else 13))
            if 1 <= tl <= 5:
                n1 = len(misc1); window(misc1[(tl-1)*n1//5:tl*n1//5], base + 2, base + 17)
            m2t = 13 if (14 in cfg.kst or 15 in cfg.kst) else 14
            if tl == m2t: window(misc2[:13], base + 2, base + 17)
            if tl == m2t + 1: window(misc2[13:], base + 2, base + (17 if tl < 15 else 13))
        else:
            forced(maxcode(tl-1), base + 2, 12)
            if tl == 1: forced(misc1[:22], base + 14, 2)
            if tl == 2: forced(misc1[22:], base + 14, 2)
            if tl == 14: forced(misc2, base + 14, 2)
        if tl == 3 and cfg.pool: items[base + 14]['ldsw'] = True
        if tl == 5 and cfg.pool: items[base + 14]['ldsr'] = base + 16 + 10
        if tl == 6:
            pol = []
            if cfg.pool: pol += ["v_add_u32 v252, v252, v253", "v_add3_u32 v252, v252, v254, v255", f"v_readfirstlane_b32 s{RB+3}, v252"]
            pol += [(f"s_lshl_b32 s6, s{RB+3}, 1\ns_and_b32 s{RB+2}, s{S_W}, 1\ns_sub_u32 s6, s6, s{RB+2}\ns_lshr_b32 s{RB+2}, s6, 31" if cfg.force is None else
                     f"s_lshr_b32 s6, s{S_H}, 3\ns_xor_b32 s6, s6, s{S_P}\ns_xor_b32 s{RB+2}, s6, {cfg.force}"),
                    f"s_lshl_b32 s{RB+2}, s{RB+2}, 13", f"v_add_u32 v{V_SO}, s{RB+2}, v{V_SO}"]
            if cfg.swin: window(pol, base + 12, base + 17)
            else: forced(pol, base + 14, 2)
    send = len(items)
    def softmax(tl):
        pb = V_QA + 8*(tl % 2); tb = V_QA + 16
        e = []
        for i in range(16):
            u = i // 8
            e.append((i + 0, 0, f"v_accvgpr_read_b32 v{tb+i}, a{16*tl+i}"))
            e.append((i + 1, 1, f"v_fma_f32 v{tb+i}, v{tb+i}, s{S_C}, -v{V_MC+u}"))
            e.append((i + 2, 2, f"v_exp_f32 v{tb+i}, v{tb+i}"))
            if not cfg.ones: e.append((i + 4, 3, f"v_add_f32 v{V_L+2*u+i%2}, v{V_L+2*u+i%2}, v{tb+i}"))
            if i % 2 == 1: e.append((i + 4, 4, f"v_cvt_pk_bf16_f32 v{pb+i//2}, v{tb+i-1}, v{tb+i}"))
        e.sort(key=lambda x: (x[0], -x[1]))
        return [x[2] for x in e]
    def xreduce(r0, r1, op):
        a, b = V_T2, V_T2 + 1
        o = []
        for sw in ("v_permlane32_swap_b32", "v_permlane16_swap_b32"):
            o += [f"v_mov_b32 v{a}, v{r0}", f"v_mov_b32 v{b}, v{r1}", f"{sw} v{a}, v{r0}", f"{sw} v{b}, v{r1}",
                  f"{op} v{r0}, v{r0}, v{a}", f"{op} v{r1}, v{r1}, v{b}"]
        return o
    if cfg.ones: forced([f"v_mov_b32 v{V_ONE+i}, 0x3f803f80" for i in range(4)], send - 2, 2)
    pvbase = []
    pre = maxcode(15) + xreduce(V_M, V_M+1, "v_max_f32") + [f"v_mul_f32 v{V_MC+u}, s{S_C}, v{V_M+u}" for u in range(2)] + softmax(0)
    for tl in range(16):
        base = len(items)
        pvbase.append(base)
        pb = V_QA + 8*(tl % 2)
        Bp = [R('v', pb, 4), R('v', pb+4, 4)]
        if cfg.ones: item(('v', tl), [], Bp, [R('v', V_SUM, 4), R('v', V_SUM+4, 4)], tl == 0, A=R('v', V_ONE, 4))
        for mt in range(16):
            rel = (mt//4)*4096
            item(('v', tl), [('T', mt % 4, rel), ('T', mt % 4, rel + 2048)], Bp, acc('v', V_X, mt), tl == 0)
        if tl == 0: items[base]['pre'] = pre
        if tl == 9: items[base+2]['mem'] = [f"v_mov_b32 v{V_RDY}, 0", f"buffer_load_dword v{V_RDY}, v{V_RDY}, s[{S_DB}:{S_DB+3}], 0 offen sc0 sc1"]
        if tl == cfg.code_pf2:
            items[base+5]['mem'] = [f"s_lshl_b32 s5, s{S_W}, 12", f"s_add_u32 s5, s5, CODE_END_OFF - 16384", f"v_lshlrev_b32 v{V_T2+2}, 6, v{L}",
                                    f"v_add_u32 v{V_T2+2}, s5, v{V_T2+2}", f"global_load_dword v{V_T2+2}, v{V_T2+2}, s[92:93]"]
        if tl < 15: forced(softmax(tl+1), base, len(items) - base)
    pvend = len(items)
    outbase = pvend
    if cfg.ones: fin = [f"v_rcp_f32 v{V_L+1}, v{V_SUM}", f"v_rcp_f32 v{V_L+3}, v{V_SUM+4}"]
    else: fin = [f"v_add_f32 v{V_L}, v{V_L}, v{V_L+1}", f"v_add_f32 v{V_L+2}, v{V_L+2}, v{V_L+3}"] + xreduce(V_L, V_L+2, "v_add_f32") + \
          [f"v_rcp_f32 v{V_L+1}, v{V_L}", f"v_rcp_f32 v{V_L+3}, v{V_L+2}"]
    def norm(a):
        o = []
        for u in range(2):
            b = V_X + 16*a + 8*u
            for i in range(4):
                o += [f"v_mul_f32 v{b+2*i}, v{b+2*i}, v{V_L+1+2*u}", f"v_mul_f32 v{b+2*i+1}, v{b+2*i+1}, v{V_L+1+2*u}", f"v_cvt_pk_bf16_f32 v{b+i}, v{b+2*i}, v{b+2*i+1}"]
        return o
    window(fin, pvend - 15, pvend - 2)
    user = {}
    seqall = []
    for j in range(7):
        if j >= 1: seqall += [(j, a, 2*b + t) for b in range(2) for a in range(8) for t in range(2)]
        else: seqall += [(j, a, nt) for a in range(8) for nt in range(4)]
    if cfg.prenorm:
        km = cfg.kmerge
        seqall = [(j, a, nt) for a in range(km) for j in range(2) for nt in range(4)] + [(0, a, nt) for a in range(km, 8) for nt in range(4)] + [(1, a, 2*b + t) for b in range(2) for a in range(km, 8) for t in range(2)] + seqall[64:]
    for j, a, nt in seqall:
        ab = V_QA if j % 2 == 0 else V_T2
        rel = (a % 4)*4096
        if j < 2:
            fi = 16*(2*j + a//4) + 4*(a % 4) + nt
            item(('v', 15), [], frag(V_X, a), acc('v', ab, nt), a == 0, A=R('a', 4*fi, 4))
            user[fi] = len(items) - 1
        else:
            item(('wo', 2*j + a//4), [('T', nt, rel), ('T', nt, rel + 2048)], frag(V_X, a), acc('v', ab, nt), a == 0)
    done_at = {}
    for n_, (j, a, nt) in enumerate(seqall): done_at[(j, nt//2)] = n_
    first_need = {}
    for n_, (j, a, nt) in enumerate(seqall): first_need.setdefault(a, n_)
    first_use = {}
    for n_, (j, a, nt) in enumerate(seqall): first_use.setdefault((j, nt//2), n_)
    for a in range(8): window(norm(a) if cfg.prenorm else pack(a), pvend - 16 + 2*a + 3, outbase + first_need[a] - 1)
    for tl in range(16):
        for n_ in range(8):
            fi = 4*tl + n_//2
            items[pvbase[tl] + 1 + 2*n_].setdefault('pr', []).append((fi, n_ % 2))
    for k_, t_ in enumerate(cfg.pf3):
        while items[t_]['mem']: t_ += 1
        tv = V_RDY if t_ < send else V_T2 + 2
        items[t_]['mem'] = [f"L_pf{k_}:", f"s_bfe_u32 s7, s2, 0x20003", f"s_lshl_b32 s7, s7, 2", f"s_add_u32 s7, s7, s{S_W}", f"s_lshl_b32 s7, s7, 10",
                            f"s_add_u32 s7, s7, L_pf{k_} - {KNAME} + {cfg.pf_off}", f"v_lshlrev_b32 v{tv}, 6, v{L}", f"v_add_u32 v{tv}, s7, v{tv}",
                            f"v_min_u32 v{tv}, CODE_END_OFF - 64, v{tv}",
                            "s_mov_b64 exec, 0xffff", f"global_load_dword v{tv}, v{tv}, s[92:93]", "s_mov_b64 exec, -1"]
    N = len(items)
    def sdst(j, q): return V_X + 8*((4*j + q) % 16) + 4
    def cvts(j, q):
        b = (V_QA if j % 2 == 0 else V_T2) + 8*q
        d = sdst(j, q)
        o = []
        for i in range(4):
            if not cfg.prenorm: o += [f"v_mul_f32 v{b+2*i}, v{b+2*i}, v{V_L+1+2*(q % 2)}", f"v_mul_f32 v{b+2*i+1}, v{b+2*i+1}, v{V_L+1+2*(q % 2)}"]
            o.append(f"v_cvt_pk_bf16_f32 v{d+i}, v{b+2*i}, v{b+2*i+1}")
        return o
    lasts = []
    for c in cfg.groups: lasts.append((lasts[-1] if lasts else -1) + c)
    sched = []
    pos = cfg.st_start
    tS = {}
    sq = [(j, q) for j in range(7) for q in range(4)][:-2]
    tail = []
    busy = set()
    vt = 0
    for (j, q) in sq:
        rel = done_at[(j, q//2)] + 3
        vt = max(vt, rel) + cfg.cw
        pos = max(pos, vt)
        while pos % 32 == 25: pos += 1
        dl = min(pos - 1, first_use.get((j+2, q//2), 999) - 1, 223)
        window(cvts(j, q), outbase + rel, outbase + dl)
        tS[(j, q)] = pos
        if (4*j + q) >= 16: assert tS[((4*j+q-16)//4, q)] < rel
        if pos < 224: items[outbase + pos]['ops'].append(('S', j, q))
        else: tail.append(('S', j, q))
        pos += cfg.st_gap
    tail += [('X', 6, 2), ('X', 6, 3)]
    for j in lasts[:-1]:
        t_ = tS[(j, 3)] + cfg.t_flag
        while t_ < 224 and (t_ % 32 == 25 or items[outbase + t_]['ops']): t_ += 1
        if t_ < 224: items[outbase + t_]['ops'].append(('F', j))
        else: tail.append(('F', j))
    npoll = {lasts[0]: 1}
    j0 = 0
    rest = lasts
    if cfg.instream:
        tp, tc, gp = cfg.instream
        def put(t_, op):
            while t_ % 32 == 25 or items[outbase + t_]['ops']: t_ += 1
            items[outbase + t_]['ops'].append(op); return t_
        put(tp, ('P', lasts[0], 0)); t_ = put(tc, ('C', lasts[0]))
        for j in range(lasts[0] + 1):
            for i in range(4): t_ = put(t_ + gp, ('L', j, i))
        j0 = lasts[0] + 1; rest = lasts[1:]; npoll[rest[0]] = 1
    if len(rest) == 1: tail += [('F', 6), ('P', 6, 0)]
    elif cfg.early_a is None: tail += [('P', rest[0], 0), ('F', 6)]
    else: items[outbase + cfg.t_pa]['ops'].append(('P', rest[0], 0))
    for k, j1 in enumerate(rest):
        ld = [('L', j, i) for j in range(j0, j1 + 1) for i in range(4)]
        tail.append(('C', j1))
        if k + 1 < len(rest):
            ks = sorted({min(len(ld), x) for x in cfg.keeps}, reverse=True)
            npoll[rest[k+1]] = len(ks)
            for n_, op in enumerate(ld + [None]):
                if k == 0 and cfg.early_a is not None and n_ == cfg.early_a: tail.append(('F', 6))
                if len(ld) - n_ in ks: tail.append(('P', rest[k+1], ks.index(len(ld) - n_)))
                if op: tail.append(op)
        else: tail += ld
        j0 = j1 + 1

    def vwait(tag):
        idx = vm.index(tag)
        P(f"s_waitcnt vmcnt({min(63, len(vm)-1-idx)})")
    def emit_op(op):
        k = op[0]; j = op[1]
        if k in 'SX':
            q = op[2]
            if k == 'X':
                for x in cvts(j, q): P(x)
            if q == 0: P(f"s_lshl_b32 s{S_T}, s{ROT+j}, {PSH}")
            b = sdst(j, q)
            P(f"buffer_store_dwordx4 v[{b}:{b+3}], v{V_SO}, s[{S_WS}:{S_WS+3}], s{S_T} offen offset:{(q % 2)*2048 + (q//2)*512}{fl(cfg.st_flag)}")
            vm.append(('S', j, q))
        elif k == 'F':
            if j == lasts[0]:
                P("L_rdy:")
                P(f"v_cmp_ne_u32 vcc, 0, v{V_RDY}")
                P("s_cbranch_vccnz L_rdy_ok")
                P.slow(True)
                P(f"v_mov_b32 v{V_RDY}, 0")
                P(f"buffer_load_dword v{V_RDY}, v{V_RDY}, s[{S_DB}:{S_DB+3}], 0 offen sc0 sc1")
                P("s_waitcnt vmcnt(0)")
                P("s_sub_u32 s3, s3, 1\ns_cmp_gt_i32 s3, 0\ns_cbranch_scc1 L_rdy")
                P.slow(False)
                P("L_rdy_ok:")
                if cfg.anchor is not None: P("s_mov_b64 vcc, 0")
                if cfg.lflag: P(f"v_and_b32 v{V_RDY}, 0x2000, v{V_RDY}\nv_add_u32 v{V_FO}, v{V_FO}, v{V_RDY}\nv_add_u32 v{V_VF}, v{V_VF}, v{V_RDY}")
            P(f"s_add_u32 s6, s{RB+2}, {j+1}\nv_mov_b32 v{V_FV}, s6")
            vwait(('S', j, 3))
            if j == 6: stamp()
            P("s_mov_b64 exec, 1")
            P(f"buffer_store_dword v{V_FV}, v{V_FO}, s[{S_FL}:{S_FL+3}], 0 offen sc0 sc1")
            P("s_mov_b64 exec, -1")
            vm.append(op)
        elif k == 'P':
            pv = V_PV if op[2] == npoll[j] - 1 else V_OV + op[2]
            P(f"buffer_load_dword v{pv}, v{V_VF}, s[{S_FL}:{S_FL+3}], 0 offen sc0 sc1")
            vm.append(op)
        elif k == 'C':
            for r_ in range(npoll[j] - 1):
                vwait(('P', j, r_))
                P(f"v_and_b32 v{V_M}, 15, v{V_OV + r_}")
                P(f"v_cmp_gt_u32 vcc, {j+1}, v{V_M}")
                P(f"s_cbranch_vccz L_ok{j}")
                P.slow(True)
            vwait(('P', j, npoll[j] - 1))
            P(f"L_chk{j}:")
            P(f"v_and_b32 v{V_M}, 15, v{V_PV}")
            P(f"v_cmp_gt_u32 vcc, {j+1}, v{V_M}")
            P(f"s_cbranch_vccz L_ok{j}")
            P.slow(True)
            P(f"buffer_load_dword v{V_PV}, v{V_VF}, s[{S_FL}:{S_FL+3}], 0 offen sc0 sc1")
            P("s_waitcnt vmcnt(0)")
            P(f"s_sub_u32 s3, s3, 1\ns_cmp_gt_i32 s3, 0\ns_cbranch_scc1 L_chk{j}")
            P.slow(False)
            P(f"L_ok{j}:")
            if j == lasts[0]:
                P(f"v_cmp_lt_u32 vcc, 15, v{V_PV}")
                P(f"v_mbcnt_lo_u32_b32 v{V_M+1}, -1, 0\nv_mbcnt_hi_u32_b32 v{V_M+1}, -1, v{V_M+1}\nv_lshrrev_b32 v{V_M+1}, 4, v{V_M+1}")
                P(f"v_lshrrev_b32 v{V_M+1}, v{V_M+1}, vcc_lo")
                for i in range(4):
                    P(f"v_bfe_u32 v{V_AK+i}, v{V_M+1}, {4*i}, 1")
                    P(f"v_lshl_add_u32 v{V_AK+i}, v{V_AK+i}, 13, v{V_VR}")
            if j == 6: stamp()
        elif k == 'L':
            i = op[2]; n = 4*j + i
            if i == 0: P(f"s_lshl_b32 s{S_T+1}, s{ROT+j}, {PSH}")
            else: P(f"s_add_u32 s{S_T+1}, s{S_T+1}, {4*WGS}")
            P(f"buffer_load_dwordx4 a[{4*n}:{4*n+3}], v{V_AK+i}, s[{S_RD}:{S_RD+3}], s{S_T+1} offen{fl(cfg.ld_flag)}")
            vm.append(op)
    nb = 0
    for it in items:
        if it['reads']: it['buf'] = V_A + 4*(nb % 8); nb += 1
    rd_items = [i for i, it in enumerate(items) if it['reads']]
    issue_at = {}
    for k, j_ in enumerate(rd_items):
        if k >= cfg.pd:
            i_ = max(rd_items[k - cfg.pd], j_ - cfg.pd - 1)
            assert i_ not in issue_at
            issue_at[i_] = j_
    areg = {'K': V_AK, 'T': V_AT, 'X': V_AX, 'U': V_AK}
    regbase = {}
    def lds_off(kind, idx, sb, rel):
        r = areg[kind] + idx
        off = sb + rel - regbase.get(r, 0)
        if off < 0 or off > 65535:
            nbse = (sb // 65536) * 65536
            P(f"v_add_u32 v{r}, {(nbse - regbase.get(r, 0)) & 0xffffffff}, v{r}")
            regbase[r] = nbse; off = sb + rel - nbse
            late[0] += 1
        return r, off
    late = [0]
    baseA = []
    def issue_reads(i):
        it = items[i]
        sb = slot_of[it['stage']] * 16384
        for k, (kind, idx, rel) in enumerate(it['reads']):
            r, off = lds_off(kind, idx, sb, rel)
            ab = it['buf']
            if kind == 'K' and cfg.k128: P(f"ds_read_b128 v[{ab}:{ab+3}], v{r} offset:{off}")
            else: P(f"{'ds_read_b64' if kind == 'K' else 'ds_read_b64_tr_b16'} v[{ab+2*k}:{ab+2*k+1}], v{r} offset:{off}")
            lds.append(i)
    def early_rebase(i):
        o = []
        for (kind, idx) in sorted({(k_, x_) for k_, x_, _ in items[i]['reads']}):
            r = areg[kind] + idx
            nxt = next((j for j in rd_items if j > i and any(k_ == kind and x_ == idx for k_, x_, _ in items[j]['reads'])), None)
            if nxt is None or items[nxt]['stage'] not in slot_of or nxt - i > 40: continue
            sb = slot_of[items[nxt]['stage']] * 16384
            if not (0 <= sb - regbase.get(r, 0) <= 65536 - 16384):
                nbse = (sb // 65536) * 65536
                o.append(f"v_add_u32 v{r}, {(nbse - regbase.get(r, 0)) & 0xffffffff}, v{r}")
                regbase[r] = nbse
        return o
    published = [-1]
    poolslot = [None]; poolback = [None]
    lead = [None]
    pend = []
    xq = []
    def publish(e, i):
        nonlocal pend
        for x in pend: emit_dma(x)
        if events[e]:
            idx = max(k for k, tg in enumerate(vm) if tg in events[e])
            for s in events[e]: assert vm.count(s) == 4, (e, s)
            if events[e][0] in wpos:
                n_ = len(lds) - 1 - wpos[events[e][0]]
                if wpos[events[e][0]] > ldone[0]: P(f"s_waitcnt lgkmcnt({min(15, n_)})")
            else: P(f"s_waitcnt vmcnt({min(63, len(vm)-1-idx)})")
            waited[0] = max(waited[0], idx)
            if idx >= zero_mark and lead[0] is None: lead[0] = (qend + 16*7 + 4) if cfg.lflag else i + 3
        elif e == 47:
            assert ldone[0] == len(lds) - 1
        P("s_barrier")
        if cfg.stamps and e in cfg.stamp_events: stamp()
        published[0] = e
        if e >= 2:
            for s in events[e-2]:
                if not (s[0] == 'wo' and s[1] < 4) and not (cfg.xfree and s[0] == 'x'): free.append(slot_of[s])
            if e >= 35 and (e - 35) % 4 == 0 and (e - 35)//4 < 4: free.append(slot_of[('wo', (e - 35)//4)])
        if cfg.xfree and e >= 1 and events[e-1] and events[e-1][0][0] == 'x': free.append(slot_of[events[e-1][0]])
        if e == poolback[0]: free.append(poolslot[0])
        pend = next_stages(e, cfg.maxn if e < 47 else 10)
        if events[e] and events[e][0][0] == 'x':
            j = events[e][0][1]
            for s2 in range(2):
                for u in range(2): xq.append((j, s2, u))
    def xread():
        j, s2, u = xq.pop(0)
        r, off = lds_off('X', s2, slot_of[('x', j)]*16384, 2048*u)
        b = V_QA + 16*(j % 2) + 8*s2 + 4*u
        P(f"ds_read_b128 v[{b}:{b+3}], v{r} offset:{off}")
        lds.append(16*(2*j + s2))
        if u == 1 and ('x', j+1) in slot_of:
            sb = slot_of[('x', j+1)]*16384
            if not (0 <= sb - regbase.get(r, 0) <= 65536 - 16384):
                nbse = (sb // 65536) * 65536
                d = (nbse - regbase.get(r, 0)) & 0xffffffff
                regbase[r] = nbse
                return [f"v_add_u32 v{r}, {d}, v{r}"]
        return []
    def wait_for(i):
        assert not any(16*(2*j + s2) <= i for j, s2, u in xq)
        last = max(k for k, tg in enumerate(lds) if tg <= i)
        ldone[0] = max(ldone[0], last)
        P(f"s_waitcnt lgkmcnt({min(15, len(lds)-1-last)})")
    for k_, w_ in enumerate(cfg.qwarm):
        if w_ < 0: P(f'QW{k_}:')
    publish(0, -1)
    while xq:
        for x in xread(): P(x)
    for k in range(cfg.pd): issue_reads(rd_items[k])
    wait_for(0)
    pub_at = {}
    for i in range(N):
        t_ = issue_at.get(i)
        if t_ is not None and items[t_]['ev'] not in pub_at: pub_at[items[t_]['ev']] = i - 1
    pub_at[46] = pvend - 7; pub_at[47] = outbase + 2
    pub_item = {v: k for k, v in pub_at.items() if k > 0}
    since = 99
    over = 0
    for i, it in enumerate(items):
        if cfg.anchor is not None:
            if i == pvbase[cfg.anchor]: P('ANCHOR:')
            for w_ in cfg.warm:
                if i == pvbase[w_] + 8: P(f'WARM{w_}:')
        if i in (qend, outbase) or (i > qend and it['mem']): assert waited[0] >= max(k for k, tg in enumerate(vm) if tg[0] in ('m', 'pf')), i
        if i == send:
            for q_ in range(4):
                P(f"v_mov_b32 v{V_AK+q_}, v{V_AT+q_}"); regbase[V_AK+q_] = regbase.get(V_AT+q_, 0)
        for x in it['pre']: P(x)
        A = it['A'] or f"v[{it['buf']}:{it['buf']+3}]"
        def mf(u): P(f"v_mfma_f32_16x16x32_bf16 {it['D'][u]}, {A}, {it['B'][u]}, {'0' if it['first'] else it['D'][u]}")
        mf(0); P.ins[-1].m0 = True
        if i + 1 < N and (items[i+1]['reads'] or max(k for k, tg in enumerate(lds) if tg <= i + 1) > ldone[0]): wait_for(i + 1)
        must = []
        if i in issue_at:
            issue_reads(issue_at[i])
            must = early_rebase(issue_at[i])
        if True:
            for _ in range(2 - (len(items[issue_at[i]]['reads']) if i in issue_at else 0)):
                if fifo and fifo[0][0] <= i and cost(fifo[0][2]) == 1: P(fifo.pop(0)[2])
        mf(1); P.ins[-1].m1 = True
        if cfg.extra and i < cfg.extra_end and i % 16 in (1, 5, 11, 14)[:cfg.extra]:
            for u in range(2): P(f"v_mfma_f32_16x16x32_bf16 a[{4+4*u}:{7+4*u}], {A}, {it['B'][u]}, 0")
        if cfg.sextra and qend <= i < qend + 16*15 and (i % 16) * cfg.sextra // 16 != ((i % 16) + 1) * cfg.sextra // 16:
            P(f"v_mfma_f32_16x16x32_bf16 a[240:243], {A}, {it['B'][0]}, 0")
            P(f"ds_read_b64 v[128:129], v{V_AK} offset:0\nds_read_b64 v[130:131], v{V_AK+1} offset:2048"); lds.extend([10**6, 10**6])
            P(f"v_mfma_f32_16x16x32_bf16 a[244:247], {A}, {it['B'][1]}, 0")
        room = cfg.pvroom if pvend - 17 <= i < pvend else 2
        for x in it.get('race', []): P(x)
        for (fi, hf) in it.get('pr', []):
            r, off = lds_off('U', fi % 4, slot_of[('wo', fi//16)]*16384, ((fi % 16)//4)*4096 + 2048*hf)
            P(f"ds_read_b64_tr_b16 a[{4*fi+2*hf}:{4*fi+2*hf+1}], v{r} offset:{off}")
            lds.append(min(user[fi], outbase + 1))
        shadow = True
        since += 1
        for k_, w_ in enumerate(cfg.qwarm):
            if w_ == i: P(f'QW{k_}:')
        if i in pub_item:
            publish(pub_item[i], i); shadow = False; room -= 1
            if xq: must += xread(); room -= 1
        elif i == lead[0]:
            P(f"s_cmp_lg_u32 s{S_LEAD}, 0\ns_cbranch_scc1 L_nl")
            P.slow(True)
            P(f"s_add_u32 s7, s{RB+2}, 1\nv_mov_b32 v249, s7\ns_mov_b64 exec, 1" if cfg.lflag else "v_mov_b32 v249, 1\ns_mov_b64 exec, 1")
            P(f"buffer_store_dword v249, v248, s[{S_DB}:{S_DB+3}], 0 offen sc0 sc1")
            P("s_mov_b64 exec, -1")
            P.slow(False)
            P("L_nl:")
            shadow = False; room -= 1
        else:
            nxtpub = min([x for x in pub_item if x > i], default=N)
            nd = sum(1 for x in pend if x[0] == 'D')
            urgent = len(pend) >= nxtpub - i
            if xq:
                if pend and pend[0][0] == 'S': emit_dma(pend.pop(0))
                must += xread(); room -= 1; shadow = False
            elif pend and pend[0][0] in 'SV':
                emit_dma(pend.pop(0)); shadow = False
                if (urgent or qend - 40 <= i < outbase) and pend[0][0] == 'S': emit_dma(pend.pop(0)); room -= 1
                if urgent and len(pend) >= nxtpub - i: emit_dma(pend.pop(0)); room -= 2; since = 0
            elif pend and not it['ops'] and not it['mem'] and (urgent or (not must and since >= min((cfg.dma_gap if i < qend - 40 else cfg.out_gap if i >= outbase else cfg.kv_gap), max(1, (nxtpub - i) // len(pend))))):
                emit_dma(pend.pop(0)); room -= 2; since = 0; shadow = False
        if it.get('ldsw'):
            poolslot[0] = free.pop()
            P(f"s_lshl_b32 s7, s{S_W}, 2\ns_add_u32 s7, s7, {poolslot[0]*16384}\nv_mov_b32 v250, s7\nv_mov_b32 v251, s{RB+3}")
            P("ds_write_b32 v250, v251"); lds.append(i + 8)
        if it.get('ldsr'):
            P(f"v_mov_b32 v250, {poolslot[0]*16384}")
            P("ds_read_b128 v[252:255], v250"); lds.append(it['ldsr'])
            poolback[0] = published[0] + 3
        for x in it['mem']:
            tag = ('m', 0)
            if isinstance(x, tuple): x, tag = x
            P(x); room -= 1
            if x.startswith(('buffer', 'global')): vm.append(tag)
        for op in it['ops']: emit_op(op); shadow = False
        for x in must: P(x); room -= 1; shadow = False
        while fifo and fifo[0][0] <= i:
            c = cost(fifo[0][2])
            c = (0 if shadow else 1) if c == 'S' else c
            need = any(f[1] <= i for f in fifo[:80])
            if not need:
                accu = 0
                for f in fifo[:120]:
                    if f[0] > i + 4 or f[0] == f[1]: break
                    cc = cost(f[2]); accu += 1 if cc == 'S' else cc
                    if accu > sum(2 if t_ in issue_at else cfg.freecap for t_ in range(i + 1, f[1] + 1)): need = True; break
            if c <= room or need:
                P(fifo.pop(0)[2]); room -= c; shadow = False
            else: break
        if room < 0 and (i < qend or i >= outbase): over += -room
    assert not fifo and not pend
    stamp()
    A1 = 0
    DS = [8*j + 8 for j in range(7)]
    def selector():
        P("v_mbcnt_lo_u32_b32 v64, -1, 0\nv_mbcnt_hi_u32_b32 v64, -1, v64")
        P("v_and_b32 v65, 1, v64\nv_lshlrev_b32 v65, 4, v65\nv_mov_b32 v66, 0x3f80\nv_lshlrev_b32 v66, v65, v66\nv_bfe_u32 v65, v64, 1, 3")
        for k in range(4):
            P(f"v_cmp_eq_u32 vcc, {k}, v65")
            P(f"v_cndmask_b32 v{A1+k}, 0, v66, vcc")
    for op in tail:
        emit_op(op)
        if op == ('X', 6, 3): selector()
    def finp(j):
        P(f"v_cvt_pk_bf16_f32 v{DS[j]}, v{DS[j]}, v{DS[j]+1}")
        P(f"v_cvt_pk_bf16_f32 v{DS[j]+1}, v{DS[j]+2}, v{DS[j]+3}")
        P("s_mov_b32 exec_hi, 0")
        P(f"buffer_store_dwordx2 v[{DS[j]}:{DS[j]+1}], v{V_VO}, s[{S_OUT}:{S_OUT+3}], s{ROT+j} offen{fl(cfg.out_flag)}")
        vm.append(('O', j))
        P("s_mov_b32 exec_hi, -1")
    for j in range(7):
        d = R('v', DS[j], 4)
        for i in range(4):
            n = 4*j + i
            vwait(('L', j, i))
            P(f"v_mfma_f32_16x16x32_bf16 {d}, v[{A1}:{A1+3}], a[{4*n}:{4*n+3}], {'0' if i == 0 else d}")
        if j >= 1: finp(j - 1)
    finp(6)
    if cfg.stamps:
        P("s_waitcnt vmcnt(0)")
        stamp()
        P("s_waitcnt lgkmcnt(0)")
        P(f"s_add_u32 s{S_T}, s90, 0x7000000\ns_addc_u32 s{S_T+1}, s91, 0\ns_mov_b32 s{S_T+2}, 0x100000\ns_mov_b32 s{S_T+3}, 0x20000")
        P(f"s_lshl_b32 s5, s2, 10\ns_lshl_b32 s6, s{S_W}, 8\ns_add_u32 s5, s5, s6")
        P("v_mov_b32 v1, s5")
        for k in range(nst[0]):
            P(f"v_mov_b32 v2, s{S_ST+2*k}\nv_mov_b32 v3, s{S_ST+2*k+1}")
            P(f"buffer_store_dwordx2 v[2:3], v1, s[{S_T}:{S_T+3}], 0 offen offset:{8*k}")
            P("s_nop 2")
        P(f"v_mov_b32 v2, s{RB+3}\nv_mov_b32 v3, 0\nbuffer_store_dwordx2 v[2:3], v1, s[{S_T}:{S_T+3}], 0 offen offset:248")
        P("s_waitcnt vmcnt(0)")
    P("L_end:")
    P("s_endpgm")
    for _ in range(cfg.pad): P("s_nop 0")
    P.info = dict(late=late[0], over=over)
    return P, nst[0]

DOC = """;
; One workgroup (4 waves, 32 query rows each) per (problem, batch, head); straight-line code written by a generator script.
;   Q^T = wq^T x^T  ->  S^T = K Q^T (AGPRs)  ->  true row max, exp2, P^T  ->  O^T = V^T P^T, row sums by a ones-MFMA
;   ->  partial out^T = wo^T (O^T / sum), stored as bf16 to d_ws (write-through).
; the first wo fragments are parked in idle AGPRs.  The 16 heads of one (problem, batch) then reduce each other's partials:
; per-wave flags in d_ws (cleared by the group's leader wave, announced through d_debug), each workgroup sums 8 rows
"""
def gen(cfg):
    main, nst = gen_main(cfg)
    if cfg.align:
        import align
        main.info['align'] = align.align_items(main, lambda t: f'.amdgcn_target "amdgcn-amd-amdhsa--gfx950"\n.text\n.set CODE_END_OFF, L_end - {KNAME}\n' + t, cfg.align)
    if cfg.qwarm:
        import align
        main.info['qhooks'] = align.page_hooks(main, lambda t: f'.amdgcn_target "amdgcn-amd-amdhsa--gfx950"\n.text\n.set CODE_END_OFF, L_end - {KNAME}\n' + t, 1, KNAME + ":", "QW", "Q", cfg.koff, False)
    if cfg.anchor is not None:
        import align
        main.info['hooks'] = align.page_hooks(main, lambda t: f'.amdgcn_target "amdgcn-amd-amdhsa--gfx950"\n.text\n.set CODE_END_OFF, L_end - {KNAME}\n' + t, cfg.hooklines)
    s = HEADER
    s += f"; @launch grid=(256,1,1) block=(256,1,1) lds={cfg.nslots*16384}\n"
    s += DOC
    s += '.amdgcn_target "amdgcn-amd-amdhsa--gfx950"\n.text\n'
    s += f".set CODE_END_OFF, L_end - {KNAME}\n"
    s += f".globl {KNAME}\n.p2align 12\n.p2align 8\n.type {KNAME},@function\n" + main.text()
    s += kd(KNAME, 512, 102, 256)
    Ls = s.split('\n')
    lastk = max(i for i, l in enumerate(Ls) if 's[8:11]' in l and 'buffer_load' in l)
    assert lastk < min(i for i, l in enumerate(Ls) if 'v_mul_lo_u32 v200' in l), "K voffsets overwritten too early"
    lastq = max(i for i, l in enumerate(Ls) if ' lds' in l and ('s[16:19]' in l or 's[24:27]' in l))
    assert lastq < min(i for i, l in enumerate(Ls) if 'v_lshlrev_b32' in l and ' v192, 4' in l)
    return s, (main.nops, main.info)

if __name__ == "__main__":
    s, nops = gen(Cfg())
    open('g11.s', 'w').write(s)
    print("nops/info", nops, "lines", s.count('\n'))
```
